```python
import torch

def _softmax(x, axis=-1):
    return torch.softmax(x, dim=axis)
def _gelu(x):
    return torch.nn.functional.gelu(x, approximate="tanh")
def _silu(x):
    return torch.nn.functional.silu(x)
def _sigmoid(x):
    return torch.sigmoid(x)
def _layernorm(x, axis=-1, eps=1e-5):
    m = x.mean(dim=axis, keepdim=True)
    v = x.var(dim=axis, keepdim=True, unbiased=False)
    return (x - m) / torch.sqrt(v + eps)
def _scatter_add(tgt, idx, src, axis=0):
    return tgt.clone().index_add_(axis, idx, src)
def _segment_sum(src, seg, n):
    out = torch.zeros((n,) + src.shape[1:], dtype=src.dtype)
    return out.index_add_(0, seg, src)
def _pad(x, pw):
    flat = tuple(v for pair in reversed(pw) for v in pair)
    return torch.nn.functional.pad(x, flat)

kernel_name = 'sequential_preLN__linear_kernel_hedgehog__dense_activation_squared_relu__prompt'

def setup_inputs():

    _w = (lambda a: (lambda t: t.to(torch.bfloat16) if t.is_floating_point() else t)(torch.as_tensor(a)))
    def _A_setup():
        B, S, D, H = 1, 2048, 448, 16
        Dh = D // H
        return {
            "x": _w((lambda *s: torch.randn(*s, dtype=torch.bfloat16) * 0.05)(B, S, D)),
            "wqkv": _w((lambda *s: torch.randn(*s, dtype=torch.bfloat16) * 0.2)(D, 3 * D)),
            "w_phi": _w((lambda *s: torch.randn(*s, dtype=torch.bfloat16) * 0.2)(H, Dh, Dh) * (Dh ** -0.5)),
            "wo": _w((lambda *s: torch.randn(*s, dtype=torch.bfloat16) * 0.05)(D, D)),
        }
    _A_in = _A_setup()

    def _B_setup():
        B, S, D, F = 1, 2048, 448, 1792
        return {
            "x": _w((lambda *s: torch.randn(*s, dtype=torch.bfloat16) * 0.05)(B, S, D)),
            "w1": _w((lambda *s: torch.randn(*s, dtype=torch.bfloat16) * 0.05)(D, F)),
            "b1": _w((lambda *s: torch.randn(*s, dtype=torch.bfloat16) * 0.2)(F)),
            "w2": _w((lambda *s: torch.randn(*s, dtype=torch.bfloat16) * 0.05)(F, D)),
            "b2": _w((lambda *s: torch.randn(*s, dtype=torch.bfloat16) * 1.6)(D)),
        }
    _B_in = _B_setup()

    return {
        "A_x": _A_in["x"],
        "A_wqkv": _A_in["wqkv"],
        "A_w_phi": _A_in["w_phi"],
        "A_wo": _A_in["wo"],
        "B_x": _B_in["x"],
        "B_w1": _B_in["w1"],
        "B_b1": _B_in["b1"],
        "B_w2": _B_in["w2"],
        "B_b2": _B_in["b2"],
    }

def reference(A_x, A_wqkv, A_w_phi, A_wo, B_x, B_w1, B_b1, B_w2, B_b2):
    def _A_ref(x, wqkv, w_phi, wo):
        B, S, D = x.shape
        H = 16; Dh = D // H
        qkv = (lambda x, *d: x.permute(*d))((x @ wqkv).reshape(B, S, 3, H, Dh), 2, 0, 3, 1, 4)
        q, k, v = qkv[0], qkv[1], qkv[2]
        pq = torch.einsum("bhsd,hdf->bhsf", q, w_phi)
        pk = torch.einsum("bhsd,hdf->bhsf", k, w_phi)
        phi_q = torch.concatenate([_softmax(pq, axis=-1), _softmax(-pq, axis=-1)], axis=-1)
        phi_k = torch.concatenate([_softmax(pk, axis=-1), _softmax(-pk, axis=-1)], axis=-1)
        kv = torch.einsum("bhsf,bhsd->bhfd", phi_k, v)
        z  = torch.einsum("bhsf->bhf", phi_k)
        num = torch.einsum("bhqf,bhfd->bhqd", phi_q, kv)
        den = torch.einsum("bhqf,bhf->bhq", phi_q, z)[..., None] + 1e-6
        o = num / den
        return (lambda x, *d: x.permute(*d))(o, 0, 2, 1, 3).reshape(B, S, D) @ wo

    def _B_ref(x, w1, b1, w2, b2):
        h = torch.einsum("bsd,df->bsf", x, w1) + b1
        zero = torch.zeros_like(h)
        r = torch.where(h > zero, h, zero)
        h = r * r
        out = torch.einsum("bsf,fd->bsd", h, w2) + b2
        return out

    x = A_x
    h = x + _A_ref(_layernorm(x, axis=-1), A_wqkv, A_w_phi, A_wo)
    h2 = h + _B_ref(_layernorm(h, axis=-1), B_w1, B_b1, B_w2, B_b2)
    return h2
```

```python
import re

NAME = "sequential_preLN__linear_kernel_hedgehog__dense_activation_squared_relu__prompt"

_REG = re.compile(r"^(-|abs\(|\|)?([vas])(\d+|\[(\d+):(\d+)\])\)?\|?$")
TRANS = ("v_exp_f32", "v_log_f32", "v_rcp_f32", "v_rsq_f32", "v_sqrt_f32", "v_sin_f32", "v_cos_f32",
         "v_rcp_iflag_f32")


def regs_of(op):
    op = op.strip()
    if op in ("vcc",):
        return [("s", 106), ("s", 107)]
    if op == "vcc_lo":
        return [("s", 106)]
    if op == "vcc_hi":
        return [("s", 107)]
    if op == "exec":
        return [("s", 126), ("s", 127)]
    if op == "m0":
        return [("s", 124)]
    m = _REG.match(op)
    if not m:
        return []
    kind = m.group(2)
    if m.group(4) is not None:
        return [(kind, i) for i in range(int(m.group(4)), int(m.group(5)) + 1)]
    return [(kind, int(m.group(3)))]


class Ins:
    __slots__ = ("text", "mn", "cls", "dst", "src", "srcc", "passes", "wide_store", "data", "lds_dma",
                 "states", "dpp", "exactc", "sgemm")

    def __init__(self, text):
        self.text = text
        t = text.split(";")[0].strip()
        parts = t.split(None, 1)
        self.mn = mn = parts[0]
        rest = parts[1] if len(parts) > 1 else ""
        toks = []
        depth = 0
        cur = ""
        for ch in rest:
            if ch == "[":
                depth += 1
            if ch == "]":
                depth -= 1
            if ch == "," and depth == 0:
                toks.append(cur.strip())
                cur = ""
            else:
                cur += ch
        if cur.strip():
            toks.append(cur.strip())
        mods = []
        if toks:
            last = toks[-1].split()
            toks[-1] = last[0]
            mods = last[1:]
        self.dst, self.src, self.srcc, self.data = [], [], [], []
        self.passes = 0
        self.sgemm = False
        self.wide_store = False
        self.lds_dma = False
        self.states = 1
        self.dpp = "_dpp" in mn or any(m.startswith(("row_", "quad_perm", "wave_")) for m in mods)
        R = [regs_of(x) for x in toks]
        if mn == "s_nop":
            self.cls = "nop"
            self.states = int(toks[0], 0) + 1
        elif mn.startswith("v_mfma"):
            self.cls = "mfma"
            self.dst = R[0]
            self.src = R[1] + R[2]
            self.srcc = R[3]
            self.passes = 8 if "32x32" in mn else 4
            if mn.endswith("_f32") and mn.count("f32") == 2:
                self.sgemm = True
                self.passes *= 2
        elif mn.startswith("v_"):
            self.cls = "valu"
            if mn.startswith("v_permlane") and "swap" in mn:
                self.dst = R[0] + R[1]
                self.src = R[0] + R[1]
            elif mn.startswith(("v_add_co", "v_sub_co", "v_addc_co", "v_subb_co", "v_mad_u64")):
                self.dst = R[0] + R[1]
                self.src = sum(R[2:], [])
            else:
                self.dst = R[0]
                self.src = sum(R[1:], [])
                if mn.startswith(("v_fmac", "v_dot2c", "v_writelane", "v_pk_fmac")) or "sdwa" in mn or self.dpp:
                    self.src = self.src + R[0]
                if mn.startswith("v_cndmask") and len(toks) == 3:
                    self.src += regs_of("vcc")
        elif mn.startswith("ds_"):
            self.cls = "ds"
            if mn.startswith(("ds_read", "ds_bpermute", "ds_permute", "ds_swizzle")) or "_rtn" in mn:
                self.dst = R[0]
                self.src = sum(R[1:], [])
            else:
                self.src = sum(R, [])
        elif mn.startswith(("buffer_", "global_")):
            self.cls = "vmem"
            if "lds" in mods or "_lds_" in mn:
                self.lds_dma = True
                self.src = sum(R, []) + regs_of("m0")
            elif "_load" in mn:
                self.dst = R[0]
                self.src = sum(R[1:], [])
                if "d16" in mn:
                    self.src += R[0]
            elif "_store" in mn or "atomic" in mn:
                self.src = sum(R, [])
                di = 0 if mn.startswith("buffer_") else 1
                self.data = R[di]
                if "x3" in mn or "x4" in mn:
                    self.wide_store = True
            else:
                self.src = sum(R, [])
        elif mn.startswith("s_"):
            self.cls = "salu"
            if mn.startswith(("s_cmp", "s_waitcnt", "s_barrier", "s_branch", "s_cbranch", "s_endpgm", "s_setprio",
                              "s_sleep", "s_bitcmp")):
                self.src = sum(R, [])
            else:
                self.dst = R[0] if R else []
                self.src = sum(R[1:], [])
                if "saveexec" in mn:
                    self.dst = self.dst + regs_of("exec")
        else:
            raise ValueError("unknown instruction: " + text)


def mfma_big(p):
    if p.sgemm:
        return {8: 10, 16: 18}[p.passes]
    return {4: 8, 8: 12, 16: 20}[p.passes]


def need(p, c):
    n = 0
    pd = set(p.dst)
    if p.cls == "valu":
        vd = {r for r in pd if r[0] != "s"}
        sd = {r for r in pd if r[0] == "s"}
        isdot = p.mn.startswith("v_dot")
        if vd:
            if c.cls == "mfma" and vd & (set(c.src) | set(c.srcc)):
                n = max(n, 3 if isdot else 2)
            if c.cls == "valu":
                rd = vd & set(c.src)
                if rd:
                    if c.mn.startswith("v_permlane") or c.dpp:
                        n = max(n, 2)
                    if c.mn.startswith(("v_readlane", "v_readfirstlane")):
                        n = max(n, 1)
                    if p.mn.startswith(TRANS) and not c.mn.startswith(TRANS):
                        n = max(n, 1)
                    if "sdwa" in p.mn:
                        n = max(n, 1)
                if isdot and (rd or vd & set(c.dst)):
                    same = c.mn == p.mn
                    if same:
                        ab = set(c.src[:-len(c.dst)] if c.dst else c.src)
                        if vd & ab:
                            n = max(n, 3)
                    else:
                        n = max(n, 3)
            if isdot and c.cls in ("ds", "vmem") and vd & (set(c.src) | set(c.dst)):
                n = max(n, 3)
        if sd:
            if c.cls == "valu" and sd & set(c.src):
                n = max(n, 4 if c.mn.startswith(("v_readlane", "v_writelane")) else 2)
            if c.cls == "vmem" and sd & set(c.src):
                n = max(n, 5)
            if c.cls == "mfma" and ("s", 126) in sd:
                n = max(n, 4)
    elif p.cls == "mfma":
        big = mfma_big(p)
        if c.cls == "mfma":
            if pd & set(c.src):
                n = max(n, big)
            if pd & set(c.srcc):
                if c.srcc == p.dst and c.passes == p.passes and c.sgemm == p.sgemm:
                    pass
                elif p.sgemm and not c.sgemm:
                    pass
                else:
                    n = max(n, big - 2)
            elif pd & set(c.dst):
                n = max(n, big)
        elif c.cls in ("valu", "ds", "vmem"):
            if pd & (set(c.src) | set(c.dst)):
                n = max(n, big)
        if c.cls == "valu" and set(p.srcc) & set(c.dst) and not p.sgemm:
            n = max(n, {4: 3, 8: 7, 16: 15}[p.passes])
    elif p.cls == "salu":
        if ("s", 124) in pd and c.lds_dma:
            n = max(n, 1)
    if p.wide_store and set(p.data) & set(c.dst):
        n = max(n, 2)
    return n


class Asm:
    def __init__(self):
        self.items = []
        self.vm = 0
        self.lg = 0
        self.vm_done = 0
        self.lg_done = 0
        self.smem = False
        self.nlabel = 0

    def raw(self, s):
        self.items.append(s)

    def comment(self, s):
        self.items.append("; " + s)

    def label(self, name):
        self.items.append(name + ":")

    def label_nf(self, name):
        self.items.append(("nf", name + ":"))

    def branch_nf(self, text):
        self.items.append(("nf", "    " + text))

    def newlabel(self, base):
        self.nlabel += 1
        return f"L_{base}_{self.nlabel}"

    def __call__(self, text):
        i = Ins(text)
        self.items.append(i)
        tok = None
        if i.cls == "vmem":
            self.vm += 1
            tok = ("vm", self.vm)
        elif i.cls == "ds":
            self.lg += 1
            tok = ("lg", self.lg)
        elif i.mn.startswith(("s_load", "s_memtime", "s_memrealtime", "s_buffer_load")):
            self.smem = True
        return tok

    def wait(self, *toks):
        vm = max([t[1] for t in toks if t and t[0] == "vm"], default=0)
        lg = max([t[1] for t in toks if t and t[0] == "lg"], default=0)
        parts = []
        if vm > self.vm_done:
            n = self.vm - vm
            assert n <= 63, "vmcnt overflow"
            parts.append(f"vmcnt({n})")
            self.vm_done = vm
        if lg > self.lg_done:
            n = self.lg - lg
            if self.smem:
                n = 0
            if n > 15:
                n = 15
            parts.append(f"lgkmcnt({n})")
            self.lg_done = self.lg - n
            if n == 0:
                self.smem = False
        if parts:
            self("s_waitcnt " + " ".join(parts))

    def wait_vm(self, n=0):
        self(f"s_waitcnt vmcnt({n})")
        self.vm_done = max(self.vm_done, self.vm - n)

    def wait_lg(self):
        self("s_waitcnt lgkmcnt(0)")
        self.lg_done = self.lg
        self.smem = False

    def finalize(self):
        out = []
        hist = []
        total_nops = 0

        def emit_nops(k):
            nonlocal total_nops
            total_nops += k
            while k > 0:
                m = min(k, 16)
                out.append(f"    s_nop {m - 1}")
                k -= m

        def flush_all():
            worst = 0
            for p, el in hist:
                w = 0
                if p.cls == "mfma":
                    w = mfma_big(p)
                elif p.cls == "valu":
                    w = 5 if any(r[0] == "s" for r in p.dst) else 3
                elif p.wide_store:
                    w = 2
                elif p.cls == "salu" and ("s", 124) in p.dst:
                    w = 1
                worst = max(worst, w - el)
            if worst > 0:
                emit_nops(worst)
            hist.clear()

        for it in self.items:
            if isinstance(it, tuple):
                out.append(it[1])
                if not it[1].endswith(":"):
                    hist[:] = [(p, el + 1) for p, el in hist]
                continue
            if isinstance(it, str):
                if it.endswith(":") and not it.startswith(";"):
                    flush_all()
                out.append(it)
                continue
            if it.mn.startswith(("s_branch", "s_cbranch")):
                flush_all()
            req = 0
            for p, el in hist:
                req = max(req, need(p, it) - el)
            if req > 0:
                emit_nops(req)
                hist[:] = [(p, el + req) for p, el in hist]
            out.append("    " + it.text)
            hist[:] = [(p, el + it.states) for p, el in hist if el + it.states < 21]
            hist.append((it, 0))
        self.total_nops = total_nops
        return "\n".join(out) + "\n"


def kernel_text(body, lds, nvgpr=512, accum=256, grid=256, block=256, head_comment=""):
    s = head_comment
    s += f"; @launch grid=({grid},1,1) block=({block},1,1) lds={lds}\n"
    s += '.amdgcn_target "amdgcn-amd-amdhsa--gfx950"\n.text\n'
    s += f".globl {NAME}_kernel\n.p2align 8\n.type {NAME}_kernel,@function\n{NAME}_kernel:\n"
    s += body
    s += '.section .rodata,"a"\n.p2align 6\n'
    s += f".amdhsa_kernel {NAME}_kernel\n"
    s += f"  .amdhsa_next_free_vgpr {nvgpr}\n  .amdhsa_next_free_sgpr 102\n  .amdhsa_accum_offset {accum}\n"
    s += "  .amdhsa_group_segment_fixed_size 0\n  .amdhsa_kernarg_size 96\n  .amdhsa_user_sgpr_count 2\n"
    s += "  .amdhsa_user_sgpr_kernarg_segment_ptr 1\n  .amdhsa_system_sgpr_workgroup_id_x 1\n.end_amdhsa_kernel\n"
    return s
```

```python
import sys
from asmlib import *

WS_KVP = 0x0
WS_GB = 0x100000
GB_STRIDE = 0xB0000
GB_O, GB_HB, GB_ST, GB_FL, GB_H1 = 0x0, 0x1C000, 0x38000, 0x3A000, 0x40000
WS_RDY = 0xC00000
WS_STAMP = 0x1000000
WS_BYTES = 268435456

PIECE = 1040
R0 = 0
R1 = 58368
XW = 16384
WQ0 = R1 + 65536
CSP = R1 + 94208
MISC = 158720
WP = MISC
KVS = MISC
C1 = MISC + 4096
B1 = C1 + 448
ZW = B1 + 448
LDS_BYTES = 163840
EXS = 200
BNC = 14336

sWV, sG, sJ, sTH = 3, 4, 5, 6
SX, SWQKV, SWPHI, SWO, SW1, SB1, SW2, SB2, SOUT, SDBG, SWS = 8, 12, 16, 20, 24, 28, 32, 36, 40, 44, 48
sTOK, sWBASE, sXB, sWL, sBLK, sA, sB, sGB, sONE, sLOC, sW2, sW2L, sPAT, sCNT = range(56, 70)
sC, sD, sE, sF = 52, 53, 54, 55
sT0, sT1, sT2, sT3 = 70, 71, 72, 73
sSTAMP = 76
sNON = 100
LOG2E = 0x3fb8aa3b
SPIN = 0x4000

vL16, vW2G, vW2A = 1, 2, (3, 4)
VXR = 232

KORD = [0, 1, 4, 5, 7, 8, 11, 12, 2, 6, 9, 13, 3, 10]
W1CH = [(0, 128), (128, 160), (288, 160)]


def srd(n):
    return f"s[{n}:{n + 3}]"


def vr(n, k):
    return f"v[{n}:{n + k - 1}]"


def ar(n, k):
    return f"a[{n}:{n + k - 1}]"


class Gen:
    def __init__(self, upto=99, stamps=False, **opt):
        self.a = Asm()
        self.upto = upto
        self.stamps = stamps
        self.nstamp = 0
        self.stamp_names = stamps.split(",") if isinstance(stamps, str) else []
        self.stamp_log = []
        self.ool = []
        self.opt = dict(force_slow=0, touch=1, o_delay=40)
        self.opt.update(opt)

    def stamp(self, name):
        if name in self.stamp_names and self.nstamp < 12:
            self.stamp_log.append(name)
            r = sSTAMP + 2 * self.nstamp
            self.a(f"s_memtime s[{r}:{r + 1}]")
            self.nstamp += 1

    def make_srd(self, dst, nbytes):
        a = self.a
        a(f"s_and_b32 s{dst + 1}, s{dst + 1}, 0xffff")
        a(f"s_mov_b32 s{dst + 2}, {nbytes}")
        a(f"s_mov_b32 s{dst + 3}, 0x00020000")

    def dual(self, lines):
        a = self.a
        Ls, Lb = a.newlabel("slow"), a.newlabel("back")
        a(f"s_cmp_eq_u32 s{sLOC}, 0")
        a.branch_nf(f"s_cbranch_scc1 {Ls}")
        tok = None
        for t in lines:
            k = a(t.replace(" @", ""))
            tok = k or tok
        a.label_nf(Lb)
        self.ool += [Ls + ":", "    s_nop 15", "    s_nop 7"]
        for t in lines:
            self.ool += ["    " + t.replace(" @", " sc1"), "    s_nop 1"]
        self.ool += ["    s_nop 7", f"    s_branch {Lb}"]
        return tok

    def sent_check(self, regs, acc, first=True):
        a = self.a
        regs = list(regs)
        if first:
            x, y, z = regs[:3]
            a(f"v_max3_u32 v{acc}, v{x}, v{y}, v{z}")
            regs = regs[3:]
        while len(regs) >= 2:
            a(f"v_max3_u32 v{acc}, v{regs[0]}, v{regs[1]}, v{acc}")
            regs = regs[2:]
        if regs:
            a(f"v_max_u32 v{acc}, v{regs[0]}, v{acc}")

    def verify(self, acc, loads, regs, post=()):
        a = self.a
        Lr, Lb = a.newlabel("retry"), a.newlabel("ok")
        a(f"v_cmp_eq_u32 vcc, -1, v{acc}")
        a.branch_nf(f"s_cbranch_vccnz {Lr}")
        a.label_nf(Lb)
        b = Asm()
        for t in loads:
            b(t)
        b("s_waitcnt vmcnt(0)")
        for t in post:
            b(t)
        keep = self.a
        self.a = b
        self.sent_check(regs, acc)
        self.a = keep
        b(f"v_cmp_eq_u32 vcc, -1, v{acc}")
        b(f"s_sub_u32 s{sCNT}, s{sCNT}, 1")
        b(f"s_cbranch_scc1 {Lr}x")
        b(f"s_cbranch_vccnz {Lr}l")
        self.ool += [Lr + ":", "    s_nop 15", "    s_nop 7", f"    s_mov_b32 s{sCNT}, {SPIN}", Lr + "l:"]
        self.ool += b.finalize().rstrip("\n").split("\n")
        self.ool += [Lr + "x:", "    s_nop 7", f"    s_branch {Lb}"]

    def spin(self, loads, regs, acc, name):
        a = self.a
        L, Lx = a.newlabel(name), a.newlabel(name + "x")
        a(f"s_mov_b32 s{sCNT}, {SPIN}")
        a.label(L)
        for t in loads:
            a(t)
        a.wait_vm(0)
        self.sent_check(regs, acc)
        a(f"v_cmp_eq_u32 vcc, -1, v{acc}")
        a(f"s_sub_u32 s{sCNT}, s{sCNT}, 1")
        a.branch_nf(f"s_cbranch_scc1 {Lx}")
        a.branch_nf(f"s_cbranch_vccnz {L}")
        a.label_nf(Lx)

    def w2_issue(self, r):
        out = []
        for i in range(14):
            m, e = 7 * r + i // 2, i & 1
            s, sub = KORD[m >> 1], m & 1
            row0 = 32 * s + 16 * e + 8 * sub
            k = i & 3
            if k == 0:
                out.append(f"s_add_u32 m0, s{sW2L}, {i * 1024}")
            out.append(f"s_add_u32 s{sA}, s{sW2}, {row0 * 896 - k * 1024}")
            off = f" offset:{k * 1024}" if k else ""
            out.append(f"buffer_load_dwordx4 v{vW2G}, {srd(SW2)}, s{sA} offen{off} lds")
        return out

    def w2_consume(self, r):
        out = []
        for i in range(7):
            m = 7 * r + i
            for c in range(2):
                for e in range(2):
                    out.append(f"ds_read_b64_tr_b16 {ar(8 * m + 4 * c + 2 * e, 2)}, v{vW2A[c]} "
                               f"offset:{(2 * i + e) * 1024}")
        return out

    def wo_issue(self, t0, t1):
        out = [f"v_bfe_u32 v{t0}, v0, 1, 2",
               f"v_bfe_u32 v{t1}, v0, 4, 2",
               f"v_xor_b32 v{t0}, v{t0}, v{t1}",
               f"v_and_b32 v{t1}, 1, v0",
               f"v_lshl_add_u32 v{t0}, v{t0}, 1, v{t1}",
               f"v_lshrrev_b32 v{t1}, 3, v0",
               f"v_mul_u32_u24 v{t1}, 896, v{t1}",
               f"v_lshl_add_u32 v{t0}, v{t0}, 4, v{t1}",
               f"s_mul_i32 s{sB}, s{sWV}, {112 * 896}",
               f"s_lshl_b32 s7, s{sT1}, 7",
               f"s_add_u32 s{sB}, s{sB}, s7"]
        for i in range(14):
            k = i & 3
            if k == 0:
                out.append(f"s_add_u32 m0, s{sW2L}, {i * 1024}")
            out.append(f"s_add_u32 s{sA}, s{sB}, {i * 8 * 896 - k * 1024}")
            off = f" offset:{k * 1024}" if k else ""
            out.append(f"buffer_load_dwordx4 v{t0}, {srd(SWO)}, s{sA} offen{off} lds")
        return out

    def w1_issue(self, c, vG):
        r0, n = W1CH[c]
        per = n // 16
        out = []
        for i in range(per):
            g = []
            if i == 0:
                g += [f"s_mul_i32 s{sWL}, s{sWV}, {per * 4 * 224}",
                      f"s_mul_i32 s{sBLK}, s{sWV}, {per * 4 * 3584}",
                      f"s_mul_i32 s7, s{sJ}, 224",
                      f"s_add_u32 s{sBLK}, s{sBLK}, s7"]
            k = i % 5
            if k == 0:
                g.append(f"s_add_u32 m0, s{sWL}, {R1 + (r0 + 4 * i) * 224}")
            g.append(f"s_add_u32 s{sA}, s{sBLK}, {(r0 + 4 * i) * 3584 - k * 896}")
            off = f" offset:{k * 896}" if k else ""
            g += ["s_mov_b32 exec_hi, 0x00ffffff",
                  f"buffer_load_dwordx4 v{vG}, {srd(SW1)}, s{sA} offen{off} lds",
                  "s_mov_b32 exec_hi, -1"]
            out.append(g)
        return out

    def emit(self, lines):
        tok = None
        for t in lines:
            k = self.a(t)
            tok = k or tok
        return tok

    def feature_map(self, P, EP, EN, sc, padb, T, OUTP, OUTN):
        a = self.a
        mx, nm = T, T + 1
        a(f"v_max3_f32 v{mx}, v{P}, v{P + 1}, v{P + 2}")
        a(f"v_max3_f32 v{nm}, -v{P}, -v{P + 1}, -v{P + 2}")
        for i in range(3, 15, 2):
            a(f"v_max3_f32 v{mx}, v{mx}, v{P + i}, v{P + i + 1}")
            a(f"v_max3_f32 v{nm}, v{nm}, -v{P + i}, -v{P + i + 1}")
        a(f"v_max_f32 v{mx}, v{mx}, v{P + 15}")
        a(f"v_max_f32_e64 v{nm}, -v{P + 15}, v{nm}")
        a(f"v_permlane32_swap_b32 v{mx}, v{nm}")
        a(f"v_max_f32 v{mx}, v{mx}, v{nm}")
        a(f"v_mul_f32 v{mx}, v{mx}, v{sc}")
        a(f"v_sub_f32 v{mx}, 0, v{mx}")
        bp, bn, bp2, bn2 = T + 2, T + 4, T + 6, T
        a(f"v_mov_b32 v{bp}, v{mx}")
        a(f"v_mov_b32 v{bn}, v{mx}")
        a(f"v_permlane32_swap_b32 v{bp}, v{bn}")
        a(f"v_add_f32 v{bp2}, v{bp}, v{padb}")
        a(f"v_add_f32 v{bn2}, v{bn}, v{padb}")
        for i in range(0, 16, 2):
            b = bp if i < 12 else bp2
            a(f"v_pk_fma_f32 {vr(EP + i, 2)}, {vr(P + i, 2)}, {vr(sc, 2)}, {vr(b, 2)} op_sel_hi:[1,0,0]")
        for i in range(0, 16, 2):
            b = bn if i < 12 else bn2
            a(f"v_pk_fma_f32 {vr(EN + i, 2)}, {vr(P + i, 2)}, {vr(sc, 2)}, {vr(b, 2)} op_sel_hi:[1,0,0] "
              f"neg_lo:[1,0,0] neg_hi:[1,0,0]")
        for i in range(16):
            a(f"v_exp_f32 v{EP + i}, v{EP + i}")
        for i in range(16):
            a(f"v_exp_f32 v{EN + i}, v{EN + i}")
        sp, sn = T, T + 2
        for (E, s) in ((EP, sp), (EN, sn)):
            a(f"v_pk_add_f32 {vr(s, 2)}, {vr(E, 2)}, {vr(E + 2, 2)}")
        for i in range(4, 16, 2):
            for (E, s) in ((EP, sp), (EN, sn)):
                a(f"v_pk_add_f32 {vr(s, 2)}, {vr(s, 2)}, {vr(E + i, 2)}")
        a(f"v_add_f32 v{sp}, v{sp}, v{sp + 1}")
        a(f"v_add_f32 v{sn}, v{sn}, v{sn + 1}")
        a(f"v_permlane32_swap_b32 v{sp}, v{sn}")
        a(f"v_add_f32 v{sp}, v{sp}, v{sn}")
        a(f"v_rcp_f32 v{sp}, v{sp}")
        a(f"v_mov_b32 v{sn}, v{sp}")
        a(f"v_permlane32_swap_b32 v{sp}, v{sn}")
        for (E, s, O) in ((EP, sp, OUTP), (EN, sn, OUTN)):
            for i in range(0, 16, 2):
                a(f"v_pk_mul_f32 {vr(E + i, 2)}, {vr(E + i, 2)}, {vr(s, 2)} op_sel_hi:[1,0]")
            for i in range(0, 16, 2):
                a(f"v_cvt_pk_bf16_f32 v{O + i // 2}, v{E + i}, v{E + i + 1}")

    def prologue(self):
        a = self.a
        a("s_cmp_ge_u32 s2, 256")
        a("s_cbranch_scc1 L_end")
        for dst, off in ((SX, 0), (SWQKV, 8), (SWPHI, 16), (SWO, 24), (SW1, 40), (SB1, 48), (SW2, 56), (SB2, 64),
                         (SOUT, 72), (SDBG, 80), (SWS, 88)):
            a(f"s_load_dwordx2 s[{dst}:{dst + 1}], s[0:1], {off}")
        self.stamp("start")
        a("v_lshrrev_b32 v1, 6, v0")
        a("v_and_b32 v0, 63, v0")
        a(f"v_readfirstlane_b32 s{sWV}, v1")
        a("s_and_b32 s7, s2, 7")
        a("s_lshr_b32 s5, s2, 3")
        a("s_lshr_b32 s4, s5, 4")
        a("s_lshl_b32 s7, s7, 1")
        a(f"s_add_u32 s{sG}, s4, s7")
        a(f"s_and_b32 s{sJ}, s5, 15")

    def stage1(self):
        a = self.a
        vXE, vXO, vWG, vQG = 5, 6, 7, 8
        vXA = [9, 10, 11, 12]
        vWK0, vWK1, vWVv, vCK0, vCK1, vCV = 13, 14, 15, 16, 17, 18
        vWQ, vCQ, vEXW, vEXA, vEXB, vPAD, vCSW, vP0, vP3 = 19, 20, 21, 22, 23, 24, 25, 26, 27
        ssq0, ssq1, t0, t1 = 28, 29, 30, 31
        AK, AV, AQ = 32, 48, 64
        CB = 64
        WPH = 80
        csK, csV, csQ, vRDY = 88, 89, 90, 91
        vNM, vRS = 92, 94
        WB = 96
        XF = 128
        TS, vSC = 240, 248
        vFF = 252
        a(f"v_lshrrev_b32 v{t0}, 3, v0")
        a(f"v_lshrrev_b32 v{t1}, 4, v0")
        a(f"v_and_b32 v{vXE}, 7, v0")
        a(f"v_xor_b32 v{vXE}, v{vXE}, v{t1}")
        a(f"v_lshlrev_b32 v{vXE}, 4, v{vXE}")
        a("s_movk_i32 s7, 896")
        a(f"v_mad_u32_u24 v{vXE}, v{t0}, s7, v{vXE}")
        a(f"v_xor_b32 v{vXO}, 64, v{vXE}")
        a(f"v_lshrrev_b32 v{vWG}, 2, v0")
        a(f"v_xor_b32 v{vWG}, v{vWG}, v{t1}")
        a(f"v_and_b32 v{vWG}, 1, v{vWG}")
        a(f"v_add_u32 v{vWG}, 1, v{vWG}")
        a(f"v_mul_u32_u24 v{vWG}, s7, v{vWG}")
        a("s_movk_i32 s7, 2688")
        a(f"v_mad_u32_u24 v{vWG}, v{t0}, s7, v{vWG}")
        a(f"v_and_b32 v{t1}, 3, v0")
        a(f"v_lshl_add_u32 v{vWG}, v{t1}, 4, v{vWG}")
        a(f"s_lshl_b32 s{sTOK}, s{sG}, 2")
        a(f"s_add_u32 s{sTOK}, s{sTOK}, s{sWV}")
        a(f"s_mul_i32 s{sTOK}, s{sTOK}, {32 * 896}")
        a(f"s_mul_i32 s{sWBASE}, s{sWV}, {16 * 2688}")
        a(f"s_mul_i32 s7, s{sJ}, 56")
        a(f"s_add_u32 s{sWBASE}, s{sWBASE}, s7")
        a(f"s_mul_i32 s{sXB}, s{sWV}, {XW}")
        a(f"s_add_u32 s{sXB}, s{sXB}, {R1}")
        a(f"s_mul_i32 s{sWL}, s{sWV}, {2 * PIECE}")
        vTX, vTW = 32, 33
        a(f"s_lshl_b32 s{sA}, s{sJ}, 2")
        a(f"s_add_u32 s{sA}, s{sA}, s{sWV}")
        a(f"s_lshl_b32 s{sB}, s{sG}, 6")
        a(f"s_add_u32 s{sB}, s{sB}, s{sA}")
        a(f"s_mul_i32 s{sC}, s{sB}, {2 * 896}")
        a(f"v_min_u32 v{t0}, 13, v0")
        a(f"v_and_b32 v{t1}, 1, v{t0}")
        a(f"v_mul_u32_u24 v{t1}, 896, v{t1}")
        a(f"v_lshrrev_b32 v{t0}, 1, v{t0}")
        a(f"v_lshl_add_u32 v{vTX}, v{t0}, 7, v{t1}")
        a(f"v_min_u32 v{t0}, 48, v0")
        a(f"v_mul_u32_u24 v{t1}, 37, v{t0}")
        a(f"v_lshrrev_b32 v{t1}, 8, v{t1}")
        a(f"v_mul_u32_u24 v{vTW}, 7, v{t1}")
        a(f"v_sub_u32 v{t0}, v{t0}, v{vTW}")
        a(f"s_mov_b32 s7, {64 * 2688}")
        a(f"v_mul_u32_u24 v{vTW}, s7, v{t1}")
        a(f"v_lshl_add_u32 v{vTW}, v{t0}, 7, v{vTW}")
        a(f"s_and_b32 s{sB}, s{sB}, 127")
        a(f"s_lshr_b32 s{sD}, s{sB}, 1")
        a(f"s_mul_i32 s{sD}, s{sD}, 2688")
        a(f"s_and_b32 s{sB}, s{sB}, 1")
        a(f"s_mul_i32 s{sB}, s{sB}, 896")
        a(f"s_add_u32 s{sD}, s{sD}, s{sB}")
        a(f"s_add_u32 s{sD}, s{sD}, 896")
        a.wait_lg()
        self.make_srd(SX, 2048 * 896)
        self.make_srd(SWQKV, 448 * 2688)
        self.stamp("karg")
        if self.opt["touch"]:
            a(f"buffer_load_dword v{vTX}, v{vTX}, {srd(SX)}, s{sC} offen")
            a(f"buffer_load_dword v{vTW}, v{vTW}, {srd(SWQKV)}, s{sD} offen")
            if self.opt["touch"] == 2:
                a.wait_vm(0)
                self.stamp("touched")
        slot_tok = {}

        def slot_lines(i):
            o = [[f"s_add_u32 m0, s{sWL}, {8 * PIECE * i}",
                  f"s_add_u32 s{sA}, s{sWBASE}, {i * 64 * 2688}",
                  f"buffer_load_dwordx4 v{vWG}, {srd(SWQKV)}, s{sA} offen lds"],
                 [f"s_add_u32 s{sA}, s{sWBASE}, {i * 64 * 2688 + 8 * 2688 - PIECE}",
                  f"buffer_load_dwordx4 v{vWG}, {srd(SWQKV)}, s{sA} offen offset:{PIECE} lds"]]
            for q in range(4):
                vo = vXO if q & 1 else vXE
                g = [f"s_add_u32 m0, s{sXB}, {4096 * (i % 4)}"] if q == 0 else []
                g.append(f"s_add_u32 s{sA}, s{sTOK}, {128 * i + 6144 * q}")
                off = f" offset:{1024 * q}" if q else ""
                g.append(f"buffer_load_dwordx4 v{vo}, {srd(SX)}, s{sA} offen{off} lds")
                o.append(g)
            return o

        for i in range(3):
            slot_tok[i] = self.emit(sum(slot_lines(i), []))
        self.stamp("burst")
        self.make_srd(SWPHI, 16 * 1568)
        self.make_srd(SWO, 448 * 896)
        self.make_srd(SW1, 448 * 3584)
        self.make_srd(SB1, 3584)
        self.make_srd(SW2, 1792 * 896)
        self.make_srd(SB2, 896)
        self.make_srd(SOUT, 2048 * 896)
        self.make_srd(SDBG, 256)
        self.make_srd(SWS, WS_BYTES)
        a(f"v_lshlrev_b32 v{vL16}, 4, v0")
        vNON = 250
        a(f"s_or_b32 s7, s2, s{sWV}")
        a("s_cmp_lg_u32 s7, 0")
        a("s_cbranch_scc1 L_nononce")
        a(f"s_memrealtime s[{sC}:{sD}]")
        a.wait_lg()
        a(f"s_lshl_b32 s{sD}, s{sD}, 4")
        a(f"s_or_b32 s{sD}, s{sD}, 0x40000000")
        a(f"v_mov_b32 v{vNON}, s{sC}")
        a(f"v_mov_b32 v{vNON + 1}, s{sD}")
        a("s_mov_b64 exec, 1")
        a.raw(f"    buffer_store_dwordx2 {vr(vNON, 2)}, off, {srd(SDBG)}, 0 sc1")
        a("s_mov_b64 exec, -1")
        a("s_nop 1")
        a.label("L_nononce")
        sKVO = sT0
        for r in range(4):
            a(f"v_mov_b32 v{vFF + r}, -1")
        a(f"s_mul_i32 s{sGB}, s{sG}, {GB_STRIDE}")
        a(f"s_add_u32 s{sGB}, s{sGB}, {WS_GB}")
        a(f"s_lshl_b32 s{sA}, s{sJ}, 2")
        a(f"s_add_u32 s{sA}, s{sA}, s{sWV}")
        a(f"s_lshl_b32 s{sA}, s{sA}, 12")
        a(f"s_add_u32 s{sA}, s{sA}, s{sGB}")
        a(f"s_lshl_b32 s{sKVO}, s{sJ}, 4")
        a(f"s_add_u32 s{sKVO}, s{sKVO}, s{sG}")
        a(f"s_lshl_b32 s{sKVO}, s{sKVO}, 2")
        a(f"s_add_u32 s{sKVO}, s{sKVO}, s{sWV}")
        a(f"s_lshl_b32 s{sKVO}, s{sKVO}, 10")
        if WS_KVP:
            a(f"s_add_u32 s{sKVO}, s{sKVO}, {WS_KVP}")
        a(f"buffer_store_dwordx4 {vr(vFF, 4)}, v{vL16}, {srd(SWS)}, s{sKVO} offen sc1")
        for q in range(4):
            off = f" offset:{1024 * q}" if q else ""
            tk_clr = a(f"buffer_store_dwordx4 {vr(vFF, 4)}, v{vL16}, {srd(SWS)}, s{sA} offen{off} sc1")
        a(f"s_mul_i32 s{sA}, s{sJ}, 1568")
        a(f"s_mov_b32 m0, {WP}")
        a(f"s_getreg_b32 s{sPAT}, hwreg(HW_REG_XCC_ID, 0, 4)")
        a(f"buffer_load_dwordx4 v{vL16}, {srd(SWPHI)}, s{sA} offen lds")
        tk_wp = a(f"buffer_load_dwordx4 v{vL16}, {srd(SWPHI)}, s{sA} offen offset:1024 lds")
        hi, r4, c4, g1, tt, cm = 100, 101, 102, 103, 104, 105
        a(f"v_lshrrev_b32 v{hi}, 5, v0")
        a(f"v_bfe_u32 v{r4}, v0, 2, 2")
        a(f"v_and_b32 v{c4}, 3, v0")
        a(f"v_bfe_u32 v{g1}, v0, 4, 1")
        a(f"v_and_b32 v{tt}, 31, v0")
        a(f"v_bfe_u32 v{t0}, v0, 1, 3")
        a(f"v_xor_b32 v{t0}, v{t0}, v{hi}")
        a(f"v_lshlrev_b32 v{t1}, 7, v{tt}")
        a(f"v_add_u32 v{t1}, s{sXB}, v{t1}")
        for ks in range(4):
            a(f"v_xor_b32 v{vXA[ks]}, {2 * ks}, v{t0}")
            a(f"v_lshl_add_u32 v{vXA[ks]}, v{vXA[ks]}, 4, v{t1}")
        a(f"v_lshlrev_b32 v{cm}, 5, v{g1}")
        a(f"v_lshl_add_u32 v{cm}, v{c4}, 3, v{cm}")
        a(f"v_mul_u32_u24 v{t0}, {PIECE}, v{hi}")
        a(f"v_lshl_add_u32 v{t0}, v{r4}, 7, v{t0}")
        a(f"v_add_u32 v{t0}, v{t0}, v{cm}")
        a(f"v_lshrrev_b32 v{t1}, 1, v{r4}")
        a(f"v_lshl_add_u32 v{vWK0}, v{t1}, 6, v{t0}")
        a(f"v_xor_b32 v{t1}, 1, v{t1}")
        a(f"v_lshl_add_u32 v{vWVv}, v{t1}, 6, v{t0}")
        a(f"v_add_u32 v{vWK1}, 512, v{vWK0}")
        a(f"v_cmp_eq_u32 vcc, 56, v{cm}")
        a(f"v_mov_b32 v{t0}, 1024")
        a(f"v_cndmask_b32 v{vWK0}, v{vWK0}, v{t0}, vcc")
        a(f"v_cndmask_b32 v{vWK1}, v{vWK1}, v{t0}, vcc")
        a(f"v_add_u32 v{vCK0}, s{sWL}, v{vWK0}")
        a(f"v_add_u32 v{vCK1}, s{sWL}, v{vWK1}")
        a(f"v_add_u32 v{vCV}, s{sWL}, v{vWVv}")
        a(f"v_min_u32 v{t0}, 27, v0")
        a(f"v_mul_u32_u24 v{t0}, {2 * PIECE}, v{t0}")
        a("v_mov_b32 v108, 0x3f80")
        for r in (109, 110, 111, ssq0, ssq1, csK, csV, csQ):
            a(f"v_mov_b32 v{r}, 0")
        a(f"ds_write_b64 v{t0}, v[108:109] offset:1024")
        a(f"v_mov_b32 v{t1}, {ZW}")
        a(f"ds_write_b64 v{t1}, v[110:111]")
        a(f"v_lshl_add_u32 v{t1}, v{hi}, 3, v{r4}")
        a(f"v_lshl_add_u32 v{t1}, v{t1}, 6, v{cm}")
        a(f"v_add_u32 v{vWQ}, {WQ0}, v{t1}")
        a(f"s_mul_i32 s7, s{sWV}, 7168")
        a(f"v_add_u32 v{vCQ}, s7, v{vWQ}")
        a(f"v_lshrrev_b32 v{vQG}, 2, v0")
        a("s_movk_i32 s7, 2688")
        a(f"v_mul_u32_u24 v{vQG}, s7, v{vQG}")
        a(f"v_lshl_add_u32 v{vQG}, v{c4}, 4, v{vQG}")
        a(f"v_subrev_u32 v{t0}, 8, v{cm}")
        a(f"v_cndmask_b32 v{t0}, v{cm}, v{t0}, vcc")
        a(f"v_lshl_add_u32 v{t1}, v{hi}, 2, v{r4}")
        a(f"v_mul_u32_u24 v{vP0}, 56, v{t1}")
        a(f"v_add_u32 v{vP0}, v{t0}, v{vP0}")
        a(f"v_add_u32 v{vP0}, {WP}, v{vP0}")
        a(f"v_add_u32 v{vP3}, {896 + 448}, v{vP0}")
        a(f"v_cmp_eq_u32 vcc, 1, v{hi}")
        a(f"v_mov_b32 v{t0}, {ZW}")
        a(f"v_cndmask_b32 v{vP3}, v{vP3}, v{t0}, vcc")
        a(f"v_mov_b32 v{t0}, 0xf149f2ca")
        a(f"v_cndmask_b32 v{vPAD}, 0, v{t0}, vcc")
        a(f"s_mul_i32 s{sW2L}, s{sWV}, {BNC}")
        a(f"v_lshl_add_u32 v{t1}, v{t1}, 7, v{cm}")
        a(f"v_add_u32 v{t1}, s{sW2L}, v{t1}")
        a(f"s_lshr_b32 s7, s{sWV}, 1")
        a(f"v_lshrrev_b32 v{t0}, 1, v{r4}")
        a(f"v_xor_b32 v{t0}, s7, v{t0}")
        a(f"v_lshl_add_u32 v{vW2A[0]}, v{t0}, 6, v{t1}")
        a(f"v_xor_b32 v{vW2A[1]}, 64, v{vW2A[0]}")
        a(f"v_lshrrev_b32 v{t0}, 2, v0")
        a(f"v_and_b32 v{t0}, 4, v{t0}")
        a(f"v_and_b32 v{t1}, 7, v0")
        a(f"v_xor_b32 v{t0}, v{t0}, v{t1}")
        a(f"v_lshrrev_b32 v{t1}, 3, v0")
        a(f"v_mul_u32_u24 v{t1}, 896, v{t1}")
        a(f"v_lshl_add_u32 v{vW2G}, v{t0}, 4, v{t1}")
        a(f"s_sub_u32 s7, s{sJ}, 7")
        a(f"s_cmp_ge_u32 s{sJ}, 7")
        a(f"s_cselect_b32 s{sT1}, s7, s{sJ}")
        a(f"s_sub_u32 s7, s{sT1}, 7")
        a(f"s_cmp_ge_u32 s{sT1}, 7")
        a(f"s_cselect_b32 s{sT1}, s7, s{sT1}")
        a(f"s_cmp_ge_u32 s{sJ}, 7")
        a(f"s_cselect_b32 s{sTH}, 1, 0")
        a(f"s_mul_i32 s{sW2}, s{sWV}, {448 * 896}")
        a(f"s_lshl_b32 s7, s{sT1}, 7")
        a(f"s_add_u32 s{sW2}, s{sW2}, s7")
        a(f"v_mul_u32_u24 v{vEXW}, {EXS}, v{tt}")
        a(f"v_lshl_add_u32 v{vEXW}, v{hi}, 3, v{vEXW}")
        a(f"v_add_u32 v{vEXW}, s{sXB}, v{vEXW}")
        a(f"v_lshrrev_b32 v{t0}, 2, v0")
        a(f"v_mul_u32_u24 v{t0}, {EXS}, v{t0}")
        a(f"v_lshl_add_u32 v{t0}, v{c4}, 3, v{t0}")
        a(f"v_add_u32 v{vEXB}, {R1 + 128}, v{t0}")
        a(f"s_lshl_b32 s7, s{sWV}, 5")
        a(f"s_add_u32 s7, s7, {R1}")
        a(f"v_add_u32 v{vEXA}, s7, v{t0}")
        a(f"v_lshlrev_b32 v{vCSW}, 2, v0")
        a(f"v_add_u32 v{vCSW}, {CSP}, v{vCSW}")
        a(f"s_mov_b32 s{sONE}, 0x3f803f80")
        a.wait_lg()
        self.stamp("setup")

        def reads(i, ks):
            n = 4 * i + ks
            wb = WB + 8 * ks
            a(f"ds_read_b128 {vr(XF + 4 * n, 4)}, v{vXA[ks]} offset:{(i % 4) * 4096}")
            a(f"ds_read_b64_tr_b16 {vr(wb, 2)}, v{vWK0} offset:{n * 2 * PIECE}")
            a(f"ds_read_b64_tr_b16 {vr(wb + 2, 2)}, v{vWK1} offset:{n * 2 * PIECE}")
            a(f"ds_read_b64_tr_b16 {vr(wb + 4, 2)}, v{vWVv} offset:{n * 2 * PIECE}")
            return a(f"ds_read_b64_tr_b16 {vr(wb + 6, 2)}, v{vWVv} offset:{n * 2 * PIECE + 512}")

        def cs_reads(i):
            o = i * 8 * PIECE
            a(f"ds_read_b64_tr_b16 {vr(CB, 2)}, v{vCK0} offset:{o}")
            a(f"ds_read_b64_tr_b16 {vr(CB + 2, 2)}, v{vCK1} offset:{o}")
            a(f"ds_read_b64_tr_b16 {vr(CB + 4, 2)}, v{vCV} offset:{o}")
            return a(f"ds_read_b64_tr_b16 {vr(CB + 6, 2)}, v{vCV} offset:{o + 512}")

        def cs_dots():
            for d in range(4):
                a(f"v_dot2_f32_bf16 v{csK}, v{CB + d}, s{sONE}, v{csK}")
                a(f"v_dot2_f32_bf16 v{csV}, v{CB + 4 + d}, s{sONE}, v{csV}")

        def sq_dots(i, lo=0, hi_=16):
            for d in range(lo, hi_):
                r = XF + 16 * i + d
                s = ssq1 if d & 1 else ssq0
                a(f"v_dot2_f32_bf16 v{s}, v{r}, v{r}, v{s}")

        def mmk(i, ks):
            n = 4 * i + ks
            a(f"v_mfma_f32_32x32x16_bf16 {vr(AK, 16)}, {vr(WB + 8 * ks, 4)}, {vr(XF + 4 * n, 4)}, "
              f"{vr(AK, 16) if n else 0}")

        def mmv(i, ks):
            n = 4 * i + ks
            a(f"v_mfma_f32_32x32x16_bf16 {vr(AV, 16)}, {vr(WB + 8 * ks + 4, 4)}, {vr(XF + 4 * n, 4)}, "
              f"{vr(AV, 16) if n else 0}")

        def wq_lines():
            o = []
            for q in range(7):
                g = []
                if q == 0:
                    g += [f"s_mul_i32 s{sC}, s{sWV}, {7 * 16 * 2688}",
                          f"s_mul_i32 s{sD}, s{sJ}, 56",
                          f"s_add_u32 s{sC}, s{sC}, s{sD}",
                          f"s_mul_i32 s{sE}, s{sWV}, 7168"]
                k = q & 3
                if k == 0:
                    g.append(f"s_add_u32 m0, s{sE}, {WQ0 + 1024 * q}")
                g.append(f"s_add_u32 s{sA}, s{sC}, {q * 16 * 2688 - 1024 * k}")
                off = f" offset:{1024 * k}" if k else ""
                g.append(f"buffer_load_dwordx4 v{vQG}, {srd(SWQKV)}, s{sA} offen{off} lds")
                o.append(g)
            return o

        tk_wq = None
        non_ld = f"buffer_load_dwordx2 {vr(vNON, 2)}, off, {srd(SDBG)}, 0 sc1"
        for i in range(6):
            a.wait(slot_tok[i])
            self.stamp(f"w{i}")
            if i == 4:
                a.wait(tk_non)
                Lr, Lb = a.newlabel("non"), a.newlabel("nonok")
                a(f"v_cmp_eq_u32 vcc, 0, v{vNON + 1}")
                a.branch_nf(f"s_cbranch_vccnz {Lr}")
                a.label_nf(Lb)
                self.ool += [Lr + ":", "    s_nop 15", "    s_nop 7", f"    s_mov_b32 s{sCNT}, {SPIN}", Lr + "l:",
                             "    " + non_ld, "    s_waitcnt vmcnt(0)",
                             f"    v_cmp_eq_u32 vcc, 0, v{vNON + 1}",
                             f"    s_sub_u32 s{sCNT}, s{sCNT}, 1", f"    s_cbranch_scc1 {Lr}x", "    s_nop 4",
                             f"    s_cbranch_vccnz {Lr}l", Lr + "x:", "    s_nop 7", f"    s_branch {Lb}"]
                a(f"v_readfirstlane_b32 s{sNON}, v{vNON}")
                a(f"v_readfirstlane_b32 s{sNON + 1}, v{vNON + 1}")
            a("s_barrier")
            self.stamp(f"b{i}")
            tc = cs_reads(i)
            r0 = reads(i, 0)
            r1 = reads(i, 1)
            bg = slot_lines(i + 3) if i <= 3 else (wq_lines() if i == 4 else [])
            if i == 2:
                bg = [bg[0], bg[1], [non_ld]] + bg[2:]
            if i == 4:
                a(f"s_cmp_lg_u32 s{sWV}, 0")
                a("s_cbranch_scc1 L_noflag")
                a(f"s_or_b32 s7, s{sNON + 1}, s{sPAT}")
                a(f"v_mov_b32 v{vNON}, s{sNON}")
                a(f"v_mov_b32 v{vNON + 1}, s7")
                a(f"s_lshl_b32 s{sA}, s{sG}, 4")
                a(f"s_add_u32 s{sA}, s{sA}, s{sJ}")
                a(f"s_lshl_b32 s{sA}, s{sA}, 3")
                a(f"s_add_u32 s{sA}, s{sA}, {WS_RDY}")
                a("s_mov_b64 exec, 1")
                a.raw(f"    buffer_store_dwordx2 {vr(vNON, 2)}, off, {srd(SWS)}, s{sA} sc1")
                a("s_mov_b64 exec, -1")
                a("s_nop 1")
                a.label("L_noflag")
            last = [None]

            def bgl():
                if bg:
                    g = bg.pop(0)
                    tk = self.emit(g)
                    if g[-1] == non_ld:
                        return tk
                    last[0] = tk
                return None

            if i > 0:
                sq_dots(i - 1)
            a.wait(tc)
            cs_dots()
            a.wait(r0)
            mmk(i, 0)
            bgl()
            mmv(i, 0)
            r2 = reads(i, 2)
            bgl()
            a.wait(r1)
            mmk(i, 1)
            tkn = bgl()
            if tkn:
                tk_non = tkn
            mmv(i, 1)
            r3 = reads(i, 3)
            bgl()
            a.wait(r2)
            mmk(i, 2)
            bgl()
            mmv(i, 2)
            bgl()
            a.wait(r3)
            mmk(i, 3)
            bgl()
            mmv(i, 3)
            assert not bg
            if i <= 3:
                slot_tok[i + 3] = last[0]
            elif i == 4:
                tk_wq = last[0]
        i = 6
        a.wait(slot_tok[6], tk_clr, tk_wp)
        self.stamp("w6")
        a("s_barrier")
        self.stamp("b6")
        tc = cs_reads(6)
        r0 = reads(6, 0)
        r1 = reads(6, 1)
        sq_dots(5)
        a.wait(tc)
        cs_dots()
        a(f"s_lshl_b32 s7, s{sWV}, 8")
        a(f"v_add_u32 v{t0}, s7, v{vCSW}")
        a.wait(r0)
        mmk(6, 0)
        mmv(6, 0)
        a(f"ds_write_b32 v{t0}, v{csK}")
        a(f"ds_write_b32 v{t0}, v{csV} offset:1024")
        r2 = reads(6, 2)
        a.wait(r1)
        r3 = reads(6, 3)
        mmk(6, 1)
        mmv(6, 1)
        a(f"ds_read_b64_tr_b16 {vr(WPH, 2)}, v{vP0}")
        a(f"ds_read_b64_tr_b16 {vr(WPH + 2, 2)}, v{vP0} offset:448")
        a(f"ds_read_b64_tr_b16 {vr(WPH + 4, 2)}, v{vP0} offset:896")
        a(f"ds_read_b64_tr_b16 {vr(WPH + 6, 2)}, v{vP3}")
        a.wait_lg()
        sq_dots(6)
        a("s_barrier")
        self.stamp("ba")
        CP = CB
        a(f"ds_read2st64_b32 {vr(CP, 2)}, v{vCSW} offset0:0 offset1:1")
        a(f"ds_read2st64_b32 {vr(CP + 2, 2)}, v{vCSW} offset0:2 offset1:3")
        a(f"ds_read2st64_b32 {vr(CP + 4, 2)}, v{vCSW} offset0:4 offset1:5")
        tcs = a(f"ds_read2st64_b32 {vr(CP + 6, 2)}, v{vCSW} offset0:6 offset1:7")
        mmk(6, 2)
        mmk(6, 3)
        w2l = self.w2_issue(0)
        self.emit(w2l[:11])
        mmv(6, 2)
        self.emit(w2l[11:22])
        mmv(6, 3)
        tk_w2 = self.emit(w2l[22:])
        self.stamp("gemm")
        a(f"v_add_f32 v{ssq0}, v{ssq0}, v{ssq1}")
        a(f"v_mov_b32 v{t0}, v{AK + 12}")
        a(f"v_mov_b32 v{t1}, v{AK + 12}")
        a(f"v_mov_b32 v{ssq1}, v{ssq0}")
        a.wait(tcs)
        a(f"v_add_f32 v{CP}, v{CP}, v{CP + 1}")
        a(f"v_permlane32_swap_b32 v{t0}, v{t1}")
        a(f"v_add_f32 v{CP + 2}, v{CP + 2}, v{CP + 3}")
        a(f"v_mul_f32 v{vNM}, 0xbb124925, v{t1}")
        a(f"v_add_f32 v{CP}, v{CP}, v{CP + 2}")
        a(f"v_permlane32_swap_b32 v{ssq0}, v{ssq1}")
        a(f"v_add_f32 v{CP + 4}, v{CP + 4}, v{CP + 5}")
        a(f"v_mfma_f32_32x32x2_f32 {vr(AK, 16)}, v{CP}, v{vNM}, {vr(AK, 16)}")
        a(f"v_add_f32 v{CP + 6}, v{CP + 6}, v{CP + 7}")
        a(f"v_add_f32 v{ssq0}, v{ssq0}, v{ssq1}")
        a(f"v_add_f32 v{CP + 4}, v{CP + 4}, v{CP + 6}")
        a(f"v_mul_f32 v{ssq0}, 0x3b124925, v{ssq0}")
        a(f"v_fma_f32 v{ssq0}, -v{vNM}, v{vNM}, v{ssq0}")
        a(f"v_add_f32 v{ssq0}, 0x3727c5ac, v{ssq0}")
        a(f"v_rsq_f32 v{vRS}, v{ssq0}")
        a(f"v_mfma_f32_32x32x2_f32 {vr(AV, 16)}, v{CP + 4}, v{vNM}, {vr(AV, 16)}")
        a(f"v_mul_f32 v{vSC}, {LOG2E}, v{vRS}")
        KB = WB
        P = WB + 16
        VB = WB + 8
        for i in range(0, 16, 2):
            a(f"v_cvt_pk_bf16_f32 v{KB + i // 2}, v{AK + i}, v{AK + i + 1}")
        a(f"v_mfma_f32_32x32x16_bf16 {vr(P, 16)}, {vr(WPH, 4)}, {vr(KB, 4)}, 0")
        a(f"v_mfma_f32_32x32x16_bf16 {vr(P, 16)}, {vr(WPH + 4, 4)}, {vr(KB + 4, 4)}, {vr(P, 16)}")
        for i in range(16):
            a(f"v_mul_f32 v{AV + i}, v{AV + i}, v{vRS}")
        for i in range(0, 16, 2):
            a(f"v_cvt_pk_bf16_f32 v{VB + i // 2}, v{AV + i}, v{AV + i + 1}")
        a("s_mov_b32 exec_lo, 0")
        a(f"v_mov_b32 v{VB + 6}, 0x3f80")
        a(f"v_mov_b32 v{VB + 7}, 0")
        a("s_mov_b32 exec_lo, -1")
        for q in range(4):
            a(f"ds_write_b64 v{vEXW}, {vr(VB + 2 * q, 2)} offset:{128 + 16 * q}")
        self.stamp("prefm")
        EP, EN = AK, AV
        OP, ON = AQ, AQ + 8
        self.feature_map(P, EP, EN, vSC, vPAD, TS, OP, ON)
        for q in range(4):
            a(f"ds_write_b64 v{vEXW}, {vr(OP + 2 * q, 2)} offset:{16 * q}")
        for q in range(4):
            a(f"ds_write_b64 v{vEXW}, {vr(ON + 2 * q, 2)} offset:{64 + 16 * q}")
        self.stamp("postfm")
        a.wait(tk_wq)
        a.wait_lg()
        a("s_barrier")
        self.stamp("bx")
        FB = AK
        KA = WB

        def kv_reads(z):
            fb = FB + 12 * (z & 1)
            o = z * XW
            for e in range(2):
                a(f"ds_read_b64_tr_b16 {vr(fb + 2 * e, 2)}, v{vEXA} offset:{o + e * 16 * EXS}")
            for dt in range(2):
                for e in range(2):
                    tk = a(f"ds_read_b64_tr_b16 {vr(fb + 4 + 4 * dt + 2 * e, 2)}, v{vEXB} "
                           f"offset:{o + e * 16 * EXS + 32 * dt}")
            return tk

        kt = [kv_reads(0), kv_reads(1)]
        a(f"v_bfe_u32 v{t0}, v0, 4, 1")
        a(f"v_lshrrev_b32 v{t1}, 5, v0")
        a(f"v_lshlrev_b32 v{t0}, 9, v{t0}")
        a(f"v_lshl_add_u32 v{t0}, v{t1}, 8, v{t0}")
        a(f"v_and_b32 v{t1}, 15, v0")
        a(f"v_lshl_add_u32 v{t0}, v{t1}, 4, v{t0}")
        for z in range(4):
            a.wait(kt[z])
            fb = FB + 12 * (z & 1)
            for dt in range(2):
                c = vr(KA + 4 * dt, 4) if z else "0"
                a(f"v_mfma_f32_16x16x32_bf16 {vr(KA + 4 * dt, 4)}, {vr(fb, 4)}, {vr(fb + 4 + 4 * dt, 4)}, {c}")
            if z + 2 < 4:
                kt.append(kv_reads(z + 2))
        QB = AK
        tq = []
        for q in range(7):
            for e in range(2):
                tk = a(f"ds_read_b64_tr_b16 {vr(QB + 4 * q + 2 * e, 2)}, v{vCQ} offset:{1024 * q + 256 * e}")
            tq.append(tk)
        PK = WB + 8
        a(f"v_cvt_pk_bf16_f32 v{PK}, v{KA}, v{KA + 1}")
        a(f"v_cvt_pk_bf16_f32 v{PK + 1}, v{KA + 2}, v{KA + 3}")
        a(f"v_cvt_pk_bf16_f32 v{PK + 2}, v{KA + 4}, v{KA + 5}")
        a(f"v_cvt_pk_bf16_f32 v{PK + 3}, v{KA + 6}, v{KA + 7}")
        a(f"v_permlane32_swap_b32 v{PK}, v{PK + 2}")
        a(f"v_permlane32_swap_b32 v{PK + 1}, v{PK + 3}")
        a(f"buffer_store_dwordx4 {vr(PK, 4)}, v{t0}, {srd(SWS)}, s{sKVO} offen sc1")
        self.stamp("kvst")
        vRG = 249
        a(f"v_and_b32 v{t1}, 15, v0")
        a(f"s_lshl_b32 s7, s{sG}, 4")
        a(f"v_add_u32 v{vRG}, s7, v{t1}")
        a(f"v_lshl_add_u32 v{t1}, v{t1}, 4, s{sJ}")
        a(f"v_and_b32 v{t0}, 16, v0")
        a(f"v_cmp_eq_u32 vcc, 0, v{t0}")
        a(f"v_cndmask_b32 v{vRG}, v{t1}, v{vRG}, vcc")
        a(f"v_lshlrev_b32 v{vRG}, 3, v{vRG}")
        a(f"s_mov_b32 s{sT2}, {WS_RDY}")
        rdy_ld = f"buffer_load_dwordx2 {vr(vNON, 2)}, v{vRG}, {srd(SWS)}, s{sT2} offen sc1"
        tk_rdy = a(rdy_ld)
        if self.upto <= 1:
            return
        for q in range(7):
            a.wait(tq[q])
            for d in range(4):
                a(f"v_dot2_f32_bf16 v{csQ}, v{QB + 4 * q + d}, s{sONE}, v{csQ}")
        a(f"s_lshl_b32 s7, s{sWV}, 8")
        a(f"v_add_u32 v{t0}, s7, v{vCSW}")

        def q_reads(n):
            fb = QB + 4 * (n % 8)
            a(f"ds_read_b64_tr_b16 {vr(fb, 2)}, v{vWQ} offset:{1024 * n}")
            return a(f"ds_read_b64_tr_b16 {vr(fb + 2, 2)}, v{vWQ} offset:{1024 * n + 256}")

        a(f"ds_write_b32 v{t0}, v{csQ} offset:2048")
        qt = [q_reads(n) for n in range(4)]
        a.wait(tk_w2)
        bg = self.w2_consume(0)
        bg2 = self.w2_issue(1)
        for n in range(28):
            a.wait(qt[n])
            c = vr(AQ, 16) if n else "0"
            a(f"v_mfma_f32_32x32x16_bf16 {vr(AQ, 16)}, {vr(QB + 4 * (n % 8), 4)}, {vr(XF + 4 * n, 4)}, {c}")
            if n + 4 < 28:
                qt.append(q_reads(n + 4))
            if n < 14:
                tkc = self.emit(bg[2 * n:2 * n + 2])
            elif n >= 18:
                if n == 18:
                    a.wait(tkc)
                k = n - 18
                tk = self.emit(bg2[4 * k:4 * k + 4])
                tk_w2 = tk or tk_w2
        a.wait_lg()
        a("s_barrier")
        self.stamp("bq")
        a(f"ds_read2st64_b32 {vr(TS, 2)}, v{vCSW} offset0:8 offset1:9")
        tcq = a(f"ds_read2st64_b32 {vr(TS + 2, 2)}, v{vCSW} offset0:10 offset1:11")
        a.wait(tk_rdy)
        Lr, Lb = a.newlabel("rdy"), a.newlabel("rdyok")
        chk = [f"v_and_b32 v{t0}, -16, v{vNON + 1}",
               f"v_xor_b32 v{t0}, s{sNON + 1}, v{t0}",
               f"v_xor_b32 v{t1}, s{sNON}, v{vNON}",
               f"v_or_b32 v{t0}, v{t0}, v{t1}",
               f"v_cmp_ne_u32 vcc, 0, v{t0}"]
        self.emit(chk)
        a.branch_nf(f"s_cbranch_vccnz {Lr}")
        a.label_nf(Lb)
        self.ool += [Lr + ":", "    s_nop 15", "    s_nop 7", f"    s_mov_b32 s{sCNT}, {SPIN}", Lr + "l:",
                     "    " + rdy_ld, "    s_waitcnt vmcnt(0)"] + ["    " + t for t in chk] + \
                    [f"    s_sub_u32 s{sCNT}, s{sCNT}, 1", f"    s_cbranch_scc1 {Lr}x", "    s_nop 4",
                     f"    s_cbranch_vccnz {Lr}l", Lr + "x:", "    s_nop 7", f"    s_branch {Lb}"]
        LB = XF
        vKG = vXE
        a(f"v_lshrrev_b32 v{vKG}, 4, v0")
        a(f"v_and_b32 v{t0}, 15, v0")
        a(f"v_lshlrev_b32 v{t0}, 4, v{t0}")
        a(f"v_lshl_add_u32 v{vKG}, v{vKG}, 12, v{t0}")
        a(f"s_lshl_b32 s{sC}, s{sJ}, 6")
        a(f"s_add_u32 s{sC}, s{sC}, s{sWV}")
        a(f"s_lshl_b32 s{sC}, s{sC}, 10")
        if WS_KVP:
            a(f"s_add_u32 s{sC}, s{sC}, {WS_KVP}")
        a(f"s_add_u32 s{sD}, s{sC}, 16384")
        a(f"s_add_u32 s{sE}, s{sC}, 32768")
        a(f"s_add_u32 s{sF}, s{sC}, 49152")
        kvl = []
        for c4_ in range(4):
            for i in range(4):
                off = f" offset:{256 * c4_}" if c4_ else ""
                kvl.append(f"buffer_load_dwordx4 {vr(LB + 16 * c4_ + 4 * i, 4)}, v{vKG}, {srd(SWS)}, "
                           f"s{(sC, sD, sE, sF)[i]} offen{off} sc1")
        lt = [a(t) for t in kvl]
        self.stamp("kvld")
        a(f"v_and_b32 v{t1}, 15, v0")
        a(f"v_mul_u32_u24 v{t1}, 896, v{t1}")
        a(f"v_lshrrev_b32 v{VXR - 1}, 4, v0")
        a(f"v_lshl_add_u32 v{VXR - 1}, v{VXR - 1}, 3, v{t1}")
        a(f"s_lshl_b32 s{sA}, s{sG}, 1")
        a(f"s_add_u32 s{sA}, s{sA}, s{sTH}")
        a(f"s_lshl_b32 s{sA}, s{sA}, 2")
        a(f"s_add_u32 s{sA}, s{sA}, s{sWV}")
        a(f"s_mul_i32 s{sA}, s{sA}, {16 * 896}")
        a(f"s_lshl_b32 s7, s{sT1}, 7")
        a(f"s_add_u32 s{sA}, s{sA}, s7")
        for t in range(4):
            off = f" offset:{32 * t}" if t else ""
            self.tk_xr = a(f"buffer_load_dwordx2 {vr(VXR + 2 * t, 2)}, v{VXR - 1}, {srd(SX)}, s{sA} offen{off}")
        a(f"v_and_b32 v{t0}, 15, v{vNON + 1}")
        a(f"v_cmp_eq_u32 vcc, s{sPAT}, v{t0}")
        a("s_and_b32 s7, vcc_lo, 0xffff")
        a("s_cmp_eq_u32 s7, 0xffff")
        a(f"s_cselect_b32 s{sLOC}, {0 if self.opt['force_slow'] else 1}, 0")
        a.wait(tcq)
        a(f"v_add_f32 v{TS}, v{TS}, v{TS + 1}")
        a(f"v_add_f32 v{TS + 2}, v{TS + 2}, v{TS + 3}")
        a(f"v_add_f32 v{TS}, v{TS}, v{TS + 2}")
        a(f"v_mfma_f32_32x32x2_f32 {vr(AQ, 16)}, v{TS}, v{vNM}, {vr(AQ, 16)}")
        SEL = 192
        a(f"v_and_b32 v{t0}, 1, v0")
        a(f"v_cmp_eq_u32 vcc, 1, v{t0}")
        a(f"v_mov_b32 v{t0}, 0x3f80")
        a(f"v_mov_b32 v{t1}, 0x3f800000")
        a(f"v_cndmask_b32 v{t0}, v{t0}, v{t1}, vcc")
        a(f"v_bfe_u32 v{t1}, v0, 1, 2")
        for d in range(4):
            a(f"v_cmp_eq_u32 vcc, {d}, v{t1}")
            a("s_nop 1")
            a(f"v_cndmask_b32 v{SEL + d}, 0, v{t0}, vcc")
        for i in range(0, 16, 2):
            a(f"v_cvt_pk_bf16_f32 v{KB + i // 2}, v{AQ + i}, v{AQ + i + 1}")
        a(f"v_mfma_f32_32x32x16_bf16 {vr(P, 16)}, {vr(WPH, 4)}, {vr(KB, 4)}, 0")
        a(f"v_mfma_f32_32x32x16_bf16 {vr(P, 16)}, {vr(WPH + 4, 4)}, {vr(KB + 4, 4)}, {vr(P, 16)}")
        vQ = [196 + i for i in range(4)]
        q = 200
        a(f"v_lshrrev_b32 v{t0}, 5, v0")
        a(f"s_mul_i32 s7, s{sJ}, 7")
        a(f"v_add_u32 v{t0}, s7, v{t0}")
        a(f"v_and_b32 v{t1}, 15, v0")
        a(f"v_lshlrev_b32 v{t1}, 4, v{t1}")
        a(f"v_bfe_u32 v{q}, v0, 4, 1")
        a("s_movk_i32 s7, 14336")
        a(f"v_mad_u32_u24 v{t1}, v{q}, s7, v{t1}")
        for i in range(4):
            a(f"v_add_u32 v{q}, {2 * i}, v{t0}")
            a(f"v_lshrrev_b32 v{vQ[i]}, 3, v{q}")
            a(f"v_lshl_add_u32 v{vQ[i]}, v{vQ[i]}, 10, v{t1}")
            a(f"v_and_b32 v{q + 1}, 3, v{q}")
            a(f"v_lshl_add_u32 v{vQ[i]}, v{q + 1}, 8, v{vQ[i]}")
            a(f"v_bfe_u32 v{q + 1}, v{q}, 2, 1")
            a(f"v_lshl_add_u32 v{vQ[i]}, v{q + 1}, 3, v{vQ[i]}")
        PQ = AQ
        self.feature_map(P, EP, EN, vSC, vPAD, TS, PQ, PQ + 8)
        self.stamp("fq")
        a.wait(tk_w2)
        tkc = self.emit(self.w2_consume(1))
        a.wait_lg()
        self.tk_wo = self.emit(self.wo_issue(t0, t1))
        SUM = AK
        acc = t0
        a.wait(lt[15])
        self.stamp("kvarr")
        self.sent_check([LB + 4 * k for k in range(16)], acc)
        self.verify(acc, kvl, [LB + 4 * k for k in range(16)])
        for i in range(4):
            for c4_ in range(4):
                c = vr(SUM + 4 * c4_, 4) if i else "0"
                a(f"v_mfma_f32_16x16x32_bf16 {vr(SUM + 4 * c4_, 4)}, {vr(SEL, 4)}, "
                  f"{vr(LB + 16 * c4_ + 4 * i, 4)}, {c}")
        a(f"s_lshl_b32 s7, s{sWV}, 10")
        a(f"s_add_u32 s7, s7, {KVS}")
        a(f"v_and_b32 v{t0}, 15, v0")
        a(f"v_bfe_u32 v{t1}, v0, 4, 1")
        a(f"v_lshlrev_b32 v{t1}, 3, v{t1}")
        a(f"v_lshl_add_u32 v{t0}, v{t0}, 4, v{t1}")
        a(f"v_add_u32 v{t0}, s7, v{t0}")
        a(f"v_add_u32 v{t1}, {KVS}, v{vL16}")
        for c4_ in range(4):
            a(f"v_cvt_pk_bf16_f32 v{KB + 2 * c4_}, v{SUM + 4 * c4_}, v{SUM + 4 * c4_ + 1}")
            a(f"v_cvt_pk_bf16_f32 v{KB + 2 * c4_ + 1}, v{SUM + 4 * c4_ + 2}, v{SUM + 4 * c4_ + 3}")
            a(f"ds_write_b64 v{t0}, {vr(KB + 2 * c4_, 2)} offset:{256 * c4_}")
        a.wait_lg()
        a("s_barrier")
        self.stamp("bkv")
        KF = AK
        kt = [a(f"ds_read_b128 {vr(KF + 4 * u, 4)}, v{t1} offset:{1024 * u}") for u in range(4)]
        OA = P
        a(f"s_mul_i32 s{sC}, s{sWV}, {2 * 14336}")
        a(f"s_add_u32 s{sC}, s{sC}, s{sGB}")
        for u in range(4):
            a.wait(kt[u])
            c = vr(OA, 16) if u else "0"
            a(f"v_mfma_f32_32x32x16_bf16 {vr(OA, 16)}, {vr(KF + 4 * u, 4)}, {vr(PQ + 4 * u, 4)}, {c}")
        vD = 92
        a(f"v_mov_b32 v{t0}, v{OA + 12}")
        a(f"v_mov_b32 v{vD}, v{OA + 12}")
        a(f"v_permlane32_swap_b32 v{t0}, v{vD}")
        a(f"v_add_f32 v{vD}, 0x358637bd, v{vD}")
        a(f"v_rcp_f32 v{vD}, v{vD}")
        for i in range(0, 14, 2):
            a(f"v_pk_mul_f32 {vr(OA + i, 2)}, {vr(OA + i, 2)}, {vr(vD, 2)} op_sel_hi:[1,0]")
        a(f"v_pk_mul_f32 {vr(OA + 14, 2)}, {vr(OA + 14, 2)}, {vr(vD, 2)} op_sel_hi:[1,0]")
        OB = AK
        for i in range(0, 16, 2):
            a(f"v_cvt_pk_bf16_f32 v{OB + i // 2}, v{OA + i}, v{OA + i + 1}")
        st = []
        for i in range(4):
            if i == 3:
                st.append("s_mov_b32 exec_hi, 0")
            st.append(f"buffer_store_dwordx2 {vr(OB + 2 * i, 2)}, v{vQ[i]}, {srd(SWS)}, s{sC} offen @")
        st.append("s_mov_b32 exec_hi, -1")
        self.dual(st)
        self.stamp("ost")

    def stage2(self):
        a = self.a
        t0, t1 = 30, 31
        OF, ACC = 128, 200
        vWOA = [216, 217, 218, 219]
        vW1G = 5
        self.vW1G = vW1G

        def frag(s, t):
            n = 4 * s + t
            return ("a", 112 + 4 * n) if n < 36 else ("v", 32 + 4 * (n - 36))

        def fr(s, t, o, k):
            c, r = frag(s, t)
            return f"{c}[{r + o}:{r + o + k - 1}]"

        a(f"v_mul_u32_u24 v{t0}, 37, v0")
        a(f"v_lshrrev_b32 v{t0}, 9, v{t0}")
        a(f"v_mul_u32_u24 v{t1}, 14, v{t0}")
        a(f"v_sub_u32 v{t1}, v0, v{t1}")
        a("s_movk_i32 s7, 3584")
        a(f"v_mul_u32_u24 v{t0}, s7, v{t0}")
        a(f"v_lshl_add_u32 v{vW1G}, v{t1}, 4, v{t0}")
        self.emit(sum(self.w1_issue(0, vW1G), []))
        self.tk_w1 = self.emit(sum(self.w1_issue(1, vW1G), []))
        vB = 6
        a(f"s_and_b32 s{sT3}, s{sJ}, 1")
        a(f"v_lshrrev_b32 v{t0}, 3, v0")
        a(f"v_add_u32 v{t0}, s{sT3}, v{t0}")
        a(f"v_cmp_eq_u32 vcc, 7, v{t0}")
        a(f"v_cndmask_b32 v{t0}, v{t0}, 0, vcc")
        a(f"v_and_b32 v{t1}, 7, v0")
        a(f"v_lshlrev_b32 v{t1}, 2, v{t1}")
        a(f"v_lshl_add_u32 v{t0}, v{t0}, 5, v{t1}")
        a(f"s_mul_i32 s{sA}, s{sJ}, 224")
        self.tk_b1 = a(f"buffer_load_dword v{vB}, v{t0}, {srd(SB1)}, s{sA} offen")
        a(f"s_cmp_ge_u32 s{sJ}, 14")
        a("s_cbranch_scc1 L_skip2")
        a(f"v_lshrrev_b32 v{t0}, 2, v0")
        a(f"v_lshlrev_b32 v{t0}, 7, v{t0}")
        a(f"v_and_b32 v{t1}, 3, v0")
        a(f"v_lshl_add_u32 v{t0}, v{t1}, 3, v{t0}")
        a(f"v_bfe_u32 v{t1}, v0, 3, 2")
        for t in range(4):
            a(f"v_xor_b32 v{vWOA[t]}, {t}, v{t1}")
            a(f"v_lshl_add_u32 v{vWOA[t]}, v{vWOA[t]}, 5, v{t0}")
        a(f"s_lshl_b32 s{sC}, s{sTH}, 2")
        a(f"s_add_u32 s{sC}, s{sC}, s{sWV}")
        a(f"s_mul_i32 s{sC}, s{sC}, 14336")
        a(f"s_add_u32 s{sC}, s{sC}, s{sGB}")
        a(f"s_add_u32 s{sD}, s{sC}, 4096")
        a(f"s_add_u32 s{sE}, s{sC}, 8192")
        a(f"s_add_u32 s{sF}, s{sC}, 12288")
        a.wait(self.tk_wo)
        a("s_barrier")
        self.stamp("bwo")
        ol = []
        for s in range(14):
            off = f" offset:{1024 * (s & 3)}" if s & 3 else ""
            ol.append(f"buffer_load_dwordx4 {vr(OF + 4 * s, 4)}, v{vL16}, {srd(SWS)}, s{(sC, sD, sE, sF)[s >> 2]} "
                      f"offen{off} sc1")
        rd = []
        for s in range(14):
            for t in range(4):
                for hf in range(2):
                    rd.append(f"ds_read_b64_tr_b16 {fr(s, t, 2 * hf, 2)}, v{vWOA[t]} offset:{4096 * s + 2048 * hf}")
        n0 = self.opt["o_delay"]
        self.emit(rd[:n0])
        k = n0
        for s in range(14):
            tk_o = a(ol[s])
            self.emit(rd[k:k + 4])
            k += 4
        self.emit(rd[k:])
        a.wait(self.tk_xr)
        for t in range(4):
            for e in range(2):
                a(f"v_lshlrev_b32 v{ACC + 4 * t + 2 * e}, 16, v{VXR + 2 * t + e}")
                a(f"v_and_b32 v{ACC + 4 * t + 2 * e + 1}, 0xffff0000, v{VXR + 2 * t + e}")
        a.wait(tk_o)
        self.stamp("oarr")
        regs = [OF + 4 * s + d for s in range(14) for d in (0, 2)]
        self.sent_check(regs, t0)
        self.verify(t0, ol, regs)
        a.wait_lg()
        self.stamp("ook")
        w1l = self.w1_issue(2, vW1G)
        for s in range(14):
            for t in range(4):
                a(f"v_mfma_f32_16x16x32_bf16 {vr(ACC + 4 * t, 4)}, {fr(s, t, 0, 4)}, {vr(OF + 4 * s, 4)}, "
                  f"{vr(ACC + 4 * t, 4)}")
            if w1l:
                self.tk_w1 = self.emit(w1l.pop(0))
        assert not w1l
        HP = 220
        sm, sq = 228, 229
        a(f"s_lshl_b32 s7, s{sT1}, 11")
        a(f"s_add_u32 s{sC}, s{sC}, s7")
        a(f"s_add_u32 s{sC}, s{sC}, {GB_HB}")
        for i in range(8):
            a(f"v_cvt_pk_bf16_f32 v{HP + i}, v{ACC + 2 * i}, v{ACC + 2 * i + 1}")
        self.dual([f"buffer_store_dwordx4 {vr(HP, 4)}, v{vL16}, {srd(SWS)}, s{sC} offen @",
                   f"buffer_store_dwordx4 {vr(HP + 4, 4)}, v{vL16}, {srd(SWS)}, s{sC} offen offset:1024 @"])
        for i in range(8):
            a(f"v_dot2_f32_bf16 v{sm}, v{HP + i}, s{sONE}, {'v%d' % sm if i else 0}")
            a(f"v_dot2_f32_bf16 v{sq}, v{HP + i}, v{HP + i}, {'v%d' % sq if i else 0}")
        a(f"v_and_b32 v{t0}, 15, v0")
        a(f"v_lshlrev_b32 v{t0}, 6, v{t0}")
        a(f"v_lshrrev_b32 v{t1}, 5, v0")
        a(f"v_lshl_add_u32 v{t0}, v{t1}, 2, v{t0}")
        a(f"v_permlane32_swap_b32 v{sm}, v{sq}")
        a(f"s_lshl_b32 s{sD}, s{sTH}, 2")
        a(f"s_add_u32 s{sD}, s{sD}, s{sWV}")
        a(f"s_lshl_b32 s{sD}, s{sD}, 10")
        a(f"v_add_f32 v{sm}, v{sm}, v{sq}")
        a(f"s_lshl_b32 s7, s{sT1}, 3")
        a(f"s_add_u32 s{sD}, s{sD}, s7")
        a(f"v_mov_b32 v{sq}, v{sm}")
        a(f"s_add_u32 s{sD}, s{sD}, s{sGB}")
        a(f"s_add_u32 s{sD}, s{sD}, {GB_ST}")
        a(f"v_permlane16_swap_b32 v{sm}, v{sq}")
        a(f"v_add_f32 v{sm}, v{sm}, v{sq}")
        self.dual([f"buffer_store_dword v{sm}, v{t0}, {srd(SWS)}, s{sD} offen @"])
        self.stamp("hst")
        a("s_branch L_join2")
        a.label("L_skip2")
        a("s_barrier")
        for t in sum(self.w1_issue(2, vW1G), []):
            a.raw("    " + t)
        a.raw("    s_waitcnt vmcnt(0)")
        a.label("L_join2")

    def stage3(self):
        a = self.a
        t0, t1 = 30, 31
        vB = 6
        vA = (7, 8)
        vA6 = (9, 10)
        vCB = 11
        vST = 12
        vH1 = 13
        ACC, BI, HF, TM = 32, 88, 128, 240
        ONES = 16
        RS, NM, SD, MN = (20, 21), (22, 23), (24, 25), (26, 27)
        RING = 168
        NR = 20

        def ring(n):
            return RING + 4 * (n % NR)

        def rd_frag(n, u, s):
            v = (vA6 if u == 6 else vA)[s >= 7]
            o = (s % 7) * 7168 + (0 if u == 6 else 32 * u)
            a(f"ds_read_b64_tr_b16 {ar(ring(n), 2)}, v{v} offset:{o}")
            return a(f"ds_read_b64_tr_b16 {ar(ring(n) + 2, 2)}, v{v} offset:{o + 3584}")

        def rd_lines(n, u, s):
            v = (vA6 if u == 6 else vA)[s >= 7]
            o = (s % 7) * 7168 + (0 if u == 6 else 32 * u)
            return [f"ds_read_b64_tr_b16 {ar(ring(n), 2)}, v{v} offset:{o}",
                    f"ds_read_b64_tr_b16 {ar(ring(n) + 2, 2)}, v{v} offset:{o + 3584}"]

        a(f"v_lshrrev_b32 v{t0}, 2, v0")
        a(f"v_mul_u32_u24 v{t0}, 224, v{t0}")
        a(f"v_and_b32 v{t1}, 3, v0")
        a(f"v_lshl_add_u32 v{t0}, v{t1}, 3, v{t0}")
        a(f"s_lshl_b32 s7, s{sT3}, 5")
        a(f"s_add_u32 s7, s7, {R1}")
        a(f"v_add_u32 v{vA[0]}, s7, v{t0}")
        a(f"v_add_u32 v{vA[1]}, {7 * 7168}, v{vA[0]}")
        a(f"s_cmp_eq_u32 s{sT3}, 0")
        a("s_cselect_b32 s7, 192, 0")
        a(f"s_add_u32 s7, s7, {R1}")
        a(f"v_add_u32 v{vA6[0]}, s7, v{t0}")
        a(f"v_add_u32 v{vA6[1]}, {7 * 7168}, v{vA6[0]}")
        a(f"v_lshrrev_b32 v{vCB}, 4, v0")
        a(f"v_lshlrev_b32 v{vCB}, 4, v{vCB}")
        a(f"v_and_b32 v{t1}, 15, v0")
        a(f"v_lshl_add_u32 v{vST}, v{t1}, 6, v{vCB}")
        a(f"v_add_u32 v{vCB}, {C1}, v{vCB}")
        for d in range(4):
            a(f"v_mov_b32 v{ONES + d}, s{sONE}")
        a.wait(self.tk_b1)
        a(f"v_lshlrev_b32 v{TM}, 16, v{vB}")
        a(f"v_and_b32 v{TM + 1}, 0xffff0000, v{vB}")
        a(f"v_lshlrev_b32 v{t0}, 3, v0")
        a(f"v_add_u32 v{t0}, {B1}, v{t0}")
        a("s_mov_b32 exec_hi, 0x00ffffff")
        a(f"ds_write_b64 v{t0}, {vr(TM, 2)}")
        a("s_mov_b32 exec_hi, -1")
        a.wait(self.tk_w1)
        a.wait_lg()
        a("s_barrier")
        self.stamp("bw1")
        w2l = self.w2_issue(2)
        vC0, vC1 = 14, 15
        a(f"s_lshl_b32 s7, s{sWV}, 5")
        a(f"v_add_u32 v{vC0}, s7, v{vA[0]}")
        a(f"v_add_u32 v{vC1}, 128, v{vC0}")
        a(f"s_cmp_ge_u32 s{sWV}, 2")
        a("s_cselect_b64 vcc, -1, 0")
        a(f"v_cndmask_b32 v{vC1}, v{vC1}, v{vA6[0]}, vcc")
        CS = TM
        for half in range(2):
            tk = []
            for s in range(7):
                for x, v in enumerate((vC0, vC1)):
                    r = RING + 4 * (2 * s + x)
                    a(f"ds_read_b64_tr_b16 {ar(r, 2)}, v{v} offset:{s * 7168}")
                    tk.append(a(f"ds_read_b64_tr_b16 {ar(r + 2, 2)}, v{v} offset:{s * 7168 + 3584}"))
                if half == 0:
                    tkw = self.emit(w2l[:5])
                    self.tk_w2 = tkw or getattr(self, "tk_w2", None)
                    w2l = w2l[5:]
            if half == 0:
                a(f"v_add_u32 v{vC0}, {7 * 7168}, v{vC0}")
                a(f"v_add_u32 v{vC1}, {7 * 7168}, v{vC1}")
            for s in range(7):
                for x in range(2):
                    a.wait(tk[2 * s + x])
                    c = vr(CS + 4 * x, 4) if (half or s) else "0"
                    a(f"v_mfma_f32_16x16x32_bf16 {vr(CS + 4 * x, 4)}, {ar(RING + 4 * (2 * s + x), 4)}, "
                      f"{vr(ONES, 4)}, {c}")
        assert not w2l
        a(f"s_lshl_b32 s7, s{sWV}, 6")
        a(f"v_add_u32 v{t0}, s7, v{vCB}")
        a(f"s_add_u32 s7, s{sWV}, 4")
        a("s_min_u32 s7, s7, 6")
        a("s_lshl_b32 s7, s7, 6")
        a(f"v_add_u32 v{t1}, s7, v{vCB}")
        a("s_mov_b32 exec_lo, 0x00010001")
        a("s_mov_b32 exec_hi, 0x00010001")
        a(f"ds_write_b128 v{t0}, {vr(CS, 4)}")
        a(f"ds_write_b128 v{t1}, {vr(CS + 4, 4)}")
        a("s_mov_b64 exec, -1")
        self.stamp("c1")
        sH = sT0
        a(f"s_mul_i32 s{sH}, s{sWV}, {2 * 14336}")
        a(f"s_add_u32 s{sH}, s{sH}, s{sGB}")
        a(f"s_add_u32 s{sH}, s{sH}, {GB_HB}")
        a(f"s_lshl_b32 s{sT2}, s{sWV}, 11")
        a(f"s_add_u32 s{sT2}, s{sT2}, s{sGB}")
        a(f"s_add_u32 s{sT2}, s{sT2}, {GB_ST}")
        STR = 248
        GR = [(0, 4), (4, 8), (8, 11), (11, 14)]

        def hreg(tt, s):
            return HF + 8 * s + 4 * tt

        def h_lines(lo, hi_):
            o = []
            for s in range(lo, hi_):
                for tt in range(2):
                    o.append(f"s_add_u32 s{sA}, s{sH}, {(14 * tt + s) * 1024}")
                    o.append(f"buffer_load_dwordx4 {vr(hreg(tt, s), 4)}, v{vL16}, {srd(SWS)}, s{sA} offen sc1")
            return o

        st_l = [f"buffer_load_dwordx4 {vr(STR, 4)}, v{vST}, {srd(SWS)}, s{sT2} offen sc1",
                f"buffer_load_dwordx4 {vr(STR + 4, 4)}, v{vST}, {srd(SWS)}, s{sT2} offen offset:1024 sc1"]
        gl = [h_lines(*g) for g in GR]
        gl[0] = gl[0] + st_l
        gtok = []
        nfr = 0
        pre = [(u, s) for s in range(5) for u in range(4)]
        ftok = {}
        for gi in range(4):
            lines = gl[gi]
            while lines:
                n = 2 if lines[0].startswith("s_add") else 1
                tk = self.emit(lines[:n])
                lines = lines[n:]
                if pre:
                    u, s = pre.pop(0)
                    ftok[(u, s)] = rd_frag(nfr, u, s)
                    nfr += 1
            gtok.append(tk)
        assert not pre
        a.wait_lg()
        a("s_barrier")
        self.stamp("bc1")
        a(f"v_cmp_lt_u32 s[{sE}:{sF}], 47, v0")

        def gregs(gi):
            r = [hreg(tt, s) + d for s in range(*GR[gi]) for tt in range(2) for d in (0, 2)]
            return r

        def fix_lines():
            return [f"v_cndmask_b32 v{STR + 2}, v{STR + 2}, 0, s[{sE}:{sF}]",
                    f"v_cndmask_b32 v{STR + 3}, v{STR + 3}, 0, s[{sE}:{sF}]",
                    f"v_cndmask_b32 v{STR + 6}, v{STR + 6}, 0, s[{sE}:{sF}]",
                    f"v_cndmask_b32 v{STR + 7}, v{STR + 7}, 0, s[{sE}:{sF}]"]

        def check(gi):
            a.wait(gtok[gi])
            regs = gregs(gi)
            post = []
            if gi == 0:
                self.stamp("harr")
                post = fix_lines()
                self.emit(post)
                regs = regs + list(range(STR, STR + 8))
            self.sent_check(regs, t0)
            self.verify(t0, sum(gl[gi:], []) if gi else gl[0] + sum(gl[1:], []), regs, post)

        check(0)
        self.stamp("hok")
        bg = []
        S0, Q0, S1, Q1 = STR, STR + 1, STR + 4, STR + 5
        bg += [f"v_add_f32 v{S0}, v{STR}, v{STR + 2}", f"v_add_f32 v{Q0}, v{STR + 1}, v{STR + 3}",
               f"v_add_f32 v{S1}, v{STR + 4}, v{STR + 6}", f"v_add_f32 v{Q1}, v{STR + 5}, v{STR + 7}",
               f"v_permlane32_swap_b32 v{S0}, v{Q0}", f"v_permlane32_swap_b32 v{S1}, v{Q1}",
               f"v_add_f32 v{S0}, v{S0}, v{Q0}", f"v_add_f32 v{S1}, v{S1}, v{Q1}", "s_nop 0",
               f"v_permlane16_swap_b32 v{S0}, v{S1}",
               f"v_add_f32 v{S0}, v{S0}, v{S1}",
               f"v_mul_f32 v{S0}, 0x3b124925, v{S0}",
               f"v_mov_b32 v{Q0}, v{S0}", "s_nop 0",
               f"v_permlane32_swap_b32 v{S0}, v{Q0}",
               f"v_fma_f32 v{Q0}, -v{S0}, v{S0}, v{Q0}",
               f"v_add_f32 v{Q0}, 0x3727c5ac, v{Q0}",
               f"v_rsq_f32 v{RS[0]}, v{Q0}",
               f"v_sub_f32 v{MN[0]}, 0, v{S0}",
               f"v_mul_f32 v{NM[0]}, v{MN[0]}, v{RS[0]}",
               f"v_mul_f32 v{SD[0]}, v{Q0}, v{RS[0]}"]
        for P_ in (RS, NM, SD, MN):
            bg.append(f"v_mov_b32 v{P_[1]}, v{P_[0]}")
        for P_ in (RS, NM, SD, MN):
            bg.append(f"v_permlane16_swap_b32 v{P_[0]}, v{P_[1]}")
        CT, BT = TM, TM + 4
        for u in range(7):
            bg.append(("rd", [f"ds_read_b128 {vr(CT, 4)}, v{vCB} offset:{64 * u}",
                              f"ds_read_b128 {vr(BT, 4)}, v{vCB} offset:{B1 - C1 + 64 * u}"]))
            bg += ["s_nop 0"] * 0
            bg.append(("wait",))
            for tt in range(2):
                for e in range(4):
                    if u < 4:
                        bg.append(f"v_fma_f32 v{BI + 8 * u + 4 * tt + e}, v{CT + e}, v{NM[tt]}, v{BT + e}")
                    else:
                        d = ACC + 8 * u + 4 * tt + e
                        bg.append(f"v_mul_f32 v{d}, v{BT + e}, v{SD[tt]}")
                        bg.append(f"v_fma_f32 v{d}, v{CT + e}, v{MN[tt]}, v{d}")
        pend = [None]

        def bgl(n):
            k = 0
            while bg and k < n:
                it = bg[0]
                if isinstance(it, tuple):
                    if it[0] == "rd":
                        bg.pop(0)
                        pend[0] = (self.emit(it[1]), 3)
                        k += 2
                        continue
                    if it[0] == "wait":
                        tk, age = pend[0]
                        if age > 0:
                            pend[0] = (tk, age - 1)
                            return
                        a.wait(tk)
                        bg.pop(0)
                        continue
                    if it[0] == "rd1":
                        bg.pop(0)
                        self.tk_c2 = a(it[1])
                        k += 1
                        continue
                    if it[0] == "call":
                        bg.pop(0)
                        it[1]()
                        k += it[2]
                        continue
                a(bg.pop(0))
                k += 1

        seq = [(u, s) for s in range(14) for u in range(4)] + [(u, s) for s in range(14) for u in (4, 5)] + \
              [(6, s) for s in range(14)]
        rq = []
        for n in range(NR, len(seq)):
            rq += [(n, x) for x in range(2)]

        def rd_step(done):
            if rq and rq[0][0] - NR < done:
                n, x = rq.pop(0)
                u, s = seq[n]
                ftok[(u, s)] = a(rd_lines(n, u, s)[x])

        sS = sT2
        a(f"s_mul_i32 s{sS}, s{sWV}, {2 * 57344}")
        a(f"s_add_u32 s{sS}, s{sS}, s{sGB}")
        a(f"s_add_u32 s{sS}, s{sS}, {GB_H1}")
        a(f"s_mul_i32 s7, s{sJ}, 7")
        a("s_add_u32 s7, s7, 1")
        a("s_lshr_b32 s7, s7, 1")
        a("s_lshl_b32 s7, s7, 10")
        a(f"s_add_u32 s{sS}, s{sS}, s7")
        PK = TM

        def epi(u_list):
            o = []
            for tt in range(2):
                for x, u in enumerate(u_list):
                    for e in range(4):
                        d = ACC + 8 * u + 4 * tt + e
                        if u < 4:
                            o.append(f"v_fma_f32 v{d}, v{d}, v{RS[tt]}, v{BI + 8 * u + 4 * tt + e}")
                        else:
                            o.append(f"v_mul_f32 v{d}, v{d}, v{RS[tt]}")
                    for e in range(4):
                        d = ACC + 8 * u + 4 * tt + e
                        o.append(f"v_max_f32 v{d}, 0, v{d}")
                    for e in range(4):
                        d = ACC + 8 * u + 4 * tt + e
                        o.append(f"v_mul_f32 v{d}, v{d}, v{d}")
                    d = ACC + 8 * u + 4 * tt
                    p = PK + 4 * tt + 2 * x
                    o.append(f"v_cvt_pk_bf16_f32 v{p}, v{d}, v{d + 1}")
                    o.append(f"v_cvt_pk_bf16_f32 v{p + 1}, v{d + 2}, v{d + 3}")
                if len(u_list) == 2:
                    so = (u_list[0] // 2) * 1024 + tt * 57344
                    ln = [f"s_add_u32 s{sA}, s{sS}, {so}",
                          f"buffer_store_dwordx4 {vr(PK + 4 * tt, 4)}, v{vL16}, {srd(SWS)}, s{sA} offen @"]
                else:
                    ln = [f"s_add_u32 s{sA}, s{sB}, {tt * 57344}",
                          f"buffer_store_dwordx2 {vr(PK + 4 * tt, 2)}, v{vL16}, {srd(SWS)}, s{sA} offen @"]

                def st(ln=ln, key=u_list[0]):
                    self.tk_h1[key] = self.dual(ln)
                o.append(("call", st, 3))
            return o

        sFL = sT0

        self.tk_h1 = {}

        def flag(p):
            def f():
                a.wait(self.tk_h1[(2, 6)[p]])
                a(f"v_mov_b32 v{t1}, 1")
                self.dual(["s_mov_b64 exec, 1",
                           f"buffer_store_dword v{t1}, off, {srd(SWS)}, s{sFL} offset:{256 * p} @",
                           "s_mov_b64 exec, -1"])
            return f

        self.flag = flag
        self.sFL = sFL
        c2 = self.w2_consume(2)
        bg += c2[:-1] + [("rd1", c2[-1])]
        w3 = self.w2_issue(3)
        w3g = []
        while w3:
            k = 3 if w3[0].startswith("s_add_u32 m0") else 2
            w3g.append(w3[:k])
            w3 = w3[k:]

        def w3_item(g, first):
            def f():
                if first:
                    a.wait(self.tk_c2)
                self.tk_w2 = self.emit(g)
            return ("call", f, 3)

        def mix(main, extra, every):
            o = []
            for i, it in enumerate(main):
                o.append(it)
                if extra and i % every == every - 1:
                    o.append(extra.pop(0))
            return o + extra

        done = 0
        chk_at = {GR[1][0]: 1, GR[2][0]: 2, GR[3][0]: 3}
        w2c = None
        for n, (u, s) in enumerate(seq):
            if n < 56 and u == 0 and s in chk_at:
                check(chk_at[s])
            if n == 56:
                assert len(bg) < 28, len(bg)
                a(f"s_mul_i32 s7, s{sT3}, {4096 - 8}")
                a(f"s_add_u32 s{sB}, s{sS}, 3072")
                a(f"s_sub_u32 s{sB}, s{sB}, s7")
                a(f"s_lshl_b32 s{sFL}, s{sJ}, 2")
                a(f"s_add_u32 s{sFL}, s{sFL}, s{sWV}")
                a(f"s_lshl_b32 s{sFL}, s{sFL}, 2")
                a(f"s_add_u32 s{sFL}, s{sFL}, s{sGB}")
                a(f"s_add_u32 s{sFL}, s{sFL}, {GB_FL}")
                bg += mix(epi([0, 1]) + epi([2, 3]), [w3_item(g, i == 0) for i, g in enumerate(w3g)], 8)
                self.stamp("ph2")
            if n == 84:
                bg += epi([4, 5]) + [("call", flag(0), 4)]
                if self.upto >= 5:
                    bg += self.s4_setup()
                self.stamp("ph3")
            a.wait(ftok[(u, s)])
            for tt in range(2):
                d = vr(ACC + 8 * u + 4 * tt, 4)
                c = d if (s or u >= 4) else "0"
                a(f"v_mfma_f32_16x16x32_bf16 {d}, {ar(ring(n), 4)}, {vr(hreg(tt, s), 4)}, {c}")
                if tt == 1:
                    done = n + 1
                rd_step(done)
                bgl(1 + tt if n < 56 else 2)
        while bg:
            bgl(8)
        self.stamp("mm3")
        bg += epi([6])
        while bg:
            bgl(8)
        self.stamp("h1st")
        if self.upto < 5:
            flag(1)()

    def s4_setup(self):
        vFL, vFD, vH, vHB, vB2, hi, r16, tk16 = self.s4v = 14, 15, 16, 17, 18, 19, 28, 29
        HB_, B2R = 96, 104
        sHa, sHb = sTOK, sWBASE
        o = [f"v_lshrrev_b32 v{hi}, 5, v0",
             f"v_bfe_u32 v{r16}, v0, 4, 1",
             f"v_and_b32 v{tk16}, 15, v0",
             f"v_bfe_u32 v{vB2}, v0, 1, 2",
             f"v_lshlrev_b32 v{vB2}, 4, v{vB2}",
             f"v_and_b32 v{vFL}, 1, v0",
             f"v_lshl_add_u32 v{vFL}, v{vFL}, 2, v{vB2}",
             f"s_lshl_b32 s{sC}, s{sWV}, 6",
             f"s_lshl_b32 s7, s{sTH}, 3",
             f"s_add_u32 s{sC}, s{sC}, s7",
             f"s_add_u32 s{sC}, s{sC}, s{sGB}",
             f"s_add_u32 s{sC}, s{sC}, {GB_FL}"]
        self.fl = [f"buffer_load_dword v{vFD}, v{vFL}, {srd(SWS)}, s{sC} offen sc1",
                   f"buffer_load_dword v{vFD}, v{vFL}, {srd(SWS)}, s{sC} offen offset:256 sc1"]
        o += [f"v_lshlrev_b32 v{tk16}, 4, v{tk16}",
              f"v_lshl_add_u32 v{tk16}, v{hi}, 8, v{tk16}",
              "s_movk_i32 s7, 14336",
              f"v_mad_u32_u24 v{vHB}, v{r16}, s7, v{tk16}",
              "s_mov_b32 s7, 57344",
              f"v_mad_u32_u24 v{vH}, v{r16}, s7, v{tk16}",
              f"s_and_b32 s{sD}, s{sWV}, 1",
              f"s_lshl_b32 s{sE}, s{sTH}, 1",
              f"s_add_u32 s{sE}, s{sE}, s{sD}",
              f"s_mul_i32 s{sXB}, s{sE}, {2 * 14336}",
              f"s_lshr_b32 s{sF}, s{sWV}, 1",
              f"s_lshl_b32 s7, s{sT1}, 1",
              f"s_add_u32 s{sF}, s{sF}, s7",
              f"s_lshl_b32 s7, s{sF}, 10",
              f"s_add_u32 s{sXB}, s{sXB}, s7",
              f"s_add_u32 s{sXB}, s{sXB}, s{sGB}",
              f"s_add_u32 s{sXB}, s{sXB}, {GB_HB}",
              f"v_lshlrev_b32 v{vB2}, 3, v{hi}",
              f"s_lshl_b32 s{sD}, s{sF}, 6"]
        self.hbl = [f"buffer_load_dwordx4 {vr(HB_, 4)}, v{vHB}, {srd(SWS)}, s{sXB} offen sc1",
                    f"buffer_load_dwordx4 {vr(HB_ + 4, 4)}, v{vHB}, {srd(SWS)}, s{sXB} offen offset:512 sc1"]
        o += self.hbl
        for q in range(4):
            off = f" offset:{16 * q}" if q else ""
            o.append(f"buffer_load_dwordx2 {vr(B2R + 2 * q, 2)}, v{vB2}, {srd(SB2)}, s{sD} offen{off}")
        o += [f"s_mul_i32 s{sHa}, s{sE}, {2 * 57344}",
              f"s_xor_b32 s7, s{sE}, 1",
              f"s_mul_i32 s{sHb}, s7, {2 * 57344}",
              f"s_mul_i32 s7, s{sWV}, 14336",
              f"s_add_u32 s7, s7, s{sGB}",
              f"s_add_u32 s7, s7, {GB_H1}",
              f"s_add_u32 s{sHa}, s{sHa}, s7",
              f"s_add_u32 s{sHb}, s{sHb}, s7"]

        def f():
            self.tkf = self.a(self.fl[0])
        o.append(("call", f, 2))
        return o

    def stage4(self):
        a = self.a
        t0, t1 = 30, 31
        vFL, vFD, vH, vHB, vB2, hi, r16, tk16 = self.s4v
        sHa, sHb = sTOK, sWBASE
        fl = self.fl
        X = [32, 48, 64, 80]
        HB_, B2R = 96, 104
        RG = 112
        NRG = 16
        a(f"s_cmp_ge_u32 s{sJ}, 14")
        a.branch_nf("s_cbranch_scc1 L_skip4")
        self.ool += ["L_skip4:", "    s_waitcnt vmcnt(0)", f"    v_mov_b32 v{t1}, 1", "    s_mov_b64 exec, 1",
                     f"    buffer_store_dword v{t1}, off, {srd(SWS)}, s{self.sFL} offset:256 sc1",
                     "    s_mov_b64 exec, -1", "    s_nop 7", "    s_branch L_fin"]

        def spin_flag(ld):
            Lr, Lb = a.newlabel("fl"), a.newlabel("flok")
            a(f"v_cmp_ne_u32 vcc, 1, v{vFD}")
            a.branch_nf(f"s_cbranch_vccnz {Lr}")
            a.label_nf(Lb)
            self.ool += [Lr + ":", "    s_nop 15", "    s_nop 7", f"    s_mov_b32 s{sCNT}, {SPIN}", Lr + "l:",
                         "    " + ld, "    s_waitcnt vmcnt(0)",
                         f"    v_cmp_ne_u32 vcc, 1, v{vFD}",
                         f"    s_sub_u32 s{sCNT}, s{sCNT}, 1", f"    s_cbranch_scc1 {Lr}x", "    s_nop 4",
                         f"    s_cbranch_vccnz {Lr}l", Lr + "x:", "    s_nop 7", f"    s_branch {Lb}"]

        def h_load(m):
            s, sub = KORD[m >> 1], m & 1
            o = s * 1024 + sub * 512
            r = RG + 8 * (m % NRG)
            out = []
            for i, sb in enumerate((sHa, sHb)):
                out.append([f"s_add_u32 s{sA}, s{sb}, {o}",
                            f"buffer_load_dwordx4 {vr(r + 4 * i, 4)}, v{vH}, {srd(SWS)}, s{sA} offen sc1"])
            return out

        a.wait(self.tkf)
        spin_flag(fl[0])
        self.stamp("fl0")
        ht = {}
        for m in range(4):
            ht[m] = self.emit(sum(h_load(m), []))
        self.flag(1)()
        hregs = [HB_, HB_ + 2, HB_ + 4, HB_ + 6]
        self.sent_check(hregs, t0)
        self.verify(t0, self.hbl, hregs)
        q = []
        for m in range(4, 8):
            q += [(m, g) for g in h_load(m)]
        for x in range(2):
            for hf in range(2):
                aa = 2 * hf + x
                for e in range(2):
                    hr = HB_ + 4 * x + 2 * hf + e
                    br = B2R + 2 * aa + e
                    d = X[0] + 4 * aa + 2 * e
                    a(f"v_lshlrev_b32 v{d}, 16, v{hr}")
                    a(f"v_and_b32 v{d + 1}, 0xffff0000, v{hr}")
                    a(f"v_lshlrev_b32 v{t0}, 16, v{br}")
                    a(f"v_and_b32 v{t1}, 0xffff0000, v{br}")
                    a(f"v_add_f32 v{d}, v{d}, v{t0}")
                    a(f"v_add_f32 v{d + 1}, v{d + 1}, v{t1}")
                    m, g = q.pop(0)
                    ht[m] = self.emit(g)
        a.wait(self.tk_w2)
        c3 = self.w2_consume(3)
        nxt = 8
        for m in range(28):
            if m == 10:
                a.wait(tkf)
                spin_flag(fl[1])
                self.stamp("fl1")
            if m == 20:
                a("s_barrier")
            a.wait(ht[m])
            if m == 0:
                self.stamp("h1arr")
            if m == 21:
                a.wait_lg()
            r = RG + 8 * (m % NRG)
            q = []
            lim = 15 if m < 10 else 27
            for _ in range(2 if 10 <= m < 13 else 1):
                if nxt <= lim and nxt - NRG < m:
                    q += [(nxt, g) for g in h_load(nxt)]
                    nxt += 1
            for c in range(2):
                for i in range(2):
                    xi = X[2 * c + i]
                    cin = vr(xi, 16) if (m or xi == X[0]) else "0"
                    a(f"v_mfma_f32_32x32x16_bf16 {vr(xi, 16)}, {ar(8 * m + 4 * c, 4)}, {vr(r + 4 * i, 4)}, {cin}")
                    if q:
                        mm, g = q.pop(0)
                        ht[mm] = self.emit(g)
                    if m >= 4 and c3:
                        self.emit(c3[:1])
                        c3 = c3[1:]
            if m == 5:
                tkf = a(fl[1])
        assert nxt == 28
        self.stamp("mm4")
        for i in range(1, 4):
            xi = X[(i >> 1) * 2 + (i & 1)]
            a(f"s_xor_b32 s7, s{sWV}, {i}")
            a(f"s_mul_i32 s7, s7, 12288")
            a(f"s_add_u32 s7, s7, {R1 + (i - 1) * 4096}")
            a(f"v_add_u32 v{t0 + (i & 1)}, s7, v{vL16}")
            for q in range(4):
                a(f"ds_write_b128 v{t0 + (i & 1)}, {vr(xi + 4 * q, 4)} offset:{1024 * q}")
        a(f"s_mul_i32 s7, s{sWV}, 12288")
        a(f"s_add_u32 s7, s7, {R1}")
        a(f"v_add_u32 v{vFL}, s7, v{vL16}")
        a(f"v_and_b32 v{vHB}, 31, v0")
        a(f"v_mul_u32_u24 v{vHB}, 896, v{vHB}")
        a(f"v_lshl_add_u32 v{vHB}, v{hi}, 4, v{vHB}")
        a(f"s_lshl_b32 s7, s{sG}, 2")
        a(f"s_add_u32 s7, s7, s{sE}")
        a(f"s_mul_i32 s{sA}, s7, {32 * 896}")
        a(f"s_lshl_b32 s7, s{sF}, 6")
        a(f"s_add_u32 s{sA}, s{sA}, s7")
        a.wait_lg()
        a("s_barrier")
        self.stamp("bred")
        tr = []
        for i in range(3):
            for q in range(4):
                tr.append(a(f"ds_read_b128 {vr(X[1 + i] + 4 * q, 4)}, v{vFL} offset:{4096 * i + 1024 * q}"))
        for i in range(3):
            for q in range(4):
                a.wait(tr[4 * i + q])
                for e in range(4):
                    d = X[0] + 4 * q + e
                    a(f"v_add_f32 v{d}, v{d}, v{X[1 + i] + 4 * q + e}")
        PK = 96
        for i in range(8):
            a(f"v_cvt_pk_bf16_f32 v{PK + i}, v{X[0] + 2 * i}, v{X[0] + 2 * i + 1}")
        for p in range(2):
            a(f"v_permlane32_swap_b32 v{PK + 4 * p}, v{PK + 4 * p + 2}")
            a(f"v_permlane32_swap_b32 v{PK + 4 * p + 1}, v{PK + 4 * p + 3}")
        for p in range(2):
            off = f" offset:{32 * p}" if p else ""
            a(f"buffer_store_dwordx4 {vr(PK + 4 * p, 4)}, v{vHB}, {srd(SOUT)}, s{sA} offen{off}")
        a.label("L_fin")

    def epilogue(self):
        a = self.a
        if self.stamps:
            self.stamp("end")
            a.wait_lg()
            a("s_lshl_b32 s7, s2, 2")
            a(f"s_add_u32 s7, s7, s{sWV}")
            a("s_lshl_b32 s7, s7, 7")
            a(f"s_add_u32 s7, s7, {WS_STAMP}")
            a("v_mov_b32 v2, 0")
            a("s_mov_b64 exec, 1")
            for i in range(self.nstamp):
                a(f"v_mov_b32 v4, s{sSTAMP + 2 * i}")
                a(f"buffer_store_dword v4, v2, {srd(SWS)}, s7 offen offset:{4 * i}")
        a.label("L_end")
        a("s_endpgm")
        for t in self.ool:
            a.raw(t)

    def build(self):
        self.prologue()
        self.stage1()
        if self.upto >= 3:
            self.stage2()
        if self.upto >= 4:
            self.stage3()
        if self.upto >= 5:
            self.stage4()
        self.epilogue()
        return kernel_text(self.a.finalize(), LDS_BYTES)


if __name__ == "__main__":
    out = sys.argv[1]
    opt = {}
    for kv in sys.argv[4:]:
        k, v = kv.split("=")
        opt[k] = int(v)
    st = sys.argv[3] if len(sys.argv) > 3 and sys.argv[3] != "-" else False
    g = Gen(upto=int(sys.argv[2]) if len(sys.argv) > 2 else 99, stamps=st, **opt)
    open(out, "w").write(g.build())
    print("nops inserted:", g.a.total_nops, "stamps:", g.stamp_log)
```

```python
import re

NAME = "sequential_preLN__linear_kernel_hedgehog__dense_activation_squared_relu__prompt"

_REG = re.compile(r"^(-|abs\(|\|)?([vas])(\d+|\[(\d+):(\d+)\])\)?\|?$")
TRANS = ("v_exp_f32", "v_log_f32", "v_rcp_f32", "v_rsq_f32", "v_sqrt_f32", "v_sin_f32", "v_cos_f32",
         "v_rcp_iflag_f32")


def regs_of(op):
    op = op.strip()
    if op in ("vcc",):
        return [("s", 106), ("s", 107)]
    if op == "vcc_lo":
        return [("s", 106)]
    if op == "vcc_hi":
        return [("s", 107)]
    if op == "exec":
        return [("s", 126), ("s", 127)]
    if op == "m0":
        return [("s", 124)]
    m = _REG.match(op)
    if not m:
        return []
    kind = m.group(2)
    if m.group(4) is not None:
        return [(kind, i) for i in range(int(m.group(4)), int(m.group(5)) + 1)]
    return [(kind, int(m.group(3)))]


class Ins:
    __slots__ = ("text", "mn", "cls", "dst", "src", "srcc", "passes", "wide_store", "data", "lds_dma",
                 "states", "dpp", "exactc", "sgemm")

    def __init__(self, text):
        self.text = text
        t = text.split(";")[0].strip()
        parts = t.split(None, 1)
        self.mn = mn = parts[0]
        rest = parts[1] if len(parts) > 1 else ""
        toks = []
        depth = 0
        cur = ""
        for ch in rest:
            if ch == "[":
                depth += 1
            if ch == "]":
                depth -= 1
            if ch == "," and depth == 0:
                toks.append(cur.strip())
                cur = ""
            else:
                cur += ch
        if cur.strip():
            toks.append(cur.strip())
        mods = []
        if toks:
            last = toks[-1].split()
            toks[-1] = last[0]
            mods = last[1:]
        self.dst, self.src, self.srcc, self.data = [], [], [], []
        self.passes = 0
        self.sgemm = False
        self.wide_store = False
        self.lds_dma = False
        self.states = 1
        self.dpp = "_dpp" in mn or any(m.startswith(("row_", "quad_perm", "wave_")) for m in mods)
        R = [regs_of(x) for x in toks]
        if mn == "s_nop":
            self.cls = "nop"
            self.states = int(toks[0], 0) + 1
        elif mn.startswith("v_mfma"):
            self.cls = "mfma"
            self.dst = R[0]
            self.src = R[1] + R[2]
            self.srcc = R[3]
            self.passes = 8 if "32x32" in mn else 4
            if mn.endswith("_f32") and mn.count("f32") == 2:
                self.sgemm = True
                self.passes *= 2
        elif mn.startswith("v_"):
            self.cls = "valu"
            if mn.startswith("v_permlane") and "swap" in mn:
                self.dst = R[0] + R[1]
                self.src = R[0] + R[1]
            elif mn.startswith(("v_add_co", "v_sub_co", "v_addc_co", "v_subb_co", "v_mad_u64")):
                self.dst = R[0] + R[1]
                self.src = sum(R[2:], [])
            else:
                self.dst = R[0]
                self.src = sum(R[1:], [])
                if mn.startswith(("v_fmac", "v_dot2c", "v_writelane", "v_pk_fmac")) or "sdwa" in mn or self.dpp:
                    self.src = self.src + R[0]
                if mn.startswith("v_cndmask") and len(toks) == 3:
                    self.src += regs_of("vcc")
        elif mn.startswith("ds_"):
            self.cls = "ds"
            if mn.startswith(("ds_read", "ds_bpermute", "ds_permute", "ds_swizzle")) or "_rtn" in mn:
                self.dst = R[0]
                self.src = sum(R[1:], [])
            else:
                self.src = sum(R, [])
        elif mn.startswith(("buffer_", "global_")):
            self.cls = "vmem"
            if "lds" in mods or "_lds_" in mn:
                self.lds_dma = True
                self.src = sum(R, []) + regs_of("m0")
            elif "_load" in mn:
                self.dst = R[0]
                self.src = sum(R[1:], [])
                if "d16" in mn:
                    self.src += R[0]
            elif "_store" in mn or "atomic" in mn:
                self.src = sum(R, [])
                di = 0 if mn.startswith("buffer_") else 1
                self.data = R[di]
                if "x3" in mn or "x4" in mn:
                    self.wide_store = True
            else:
                self.src = sum(R, [])
        elif mn.startswith("s_"):
            self.cls = "salu"
            if mn.startswith(("s_cmp", "s_waitcnt", "s_barrier", "s_branch", "s_cbranch", "s_endpgm", "s_setprio",
                              "s_sleep", "s_bitcmp")):
                self.src = sum(R, [])
            else:
                self.dst = R[0] if R else []
                self.src = sum(R[1:], [])
                if "saveexec" in mn:
                    self.dst = self.dst + regs_of("exec")
        else:
            raise ValueError("unknown instruction: " + text)


def mfma_big(p):
    if p.sgemm:
        return {8: 10, 16: 18}[p.passes]
    return {4: 8, 8: 12, 16: 20}[p.passes]


def need(p, c):
    n = 0
    pd = set(p.dst)
    if p.cls == "valu":
        vd = {r for r in pd if r[0] != "s"}
        sd = {r for r in pd if r[0] == "s"}
        isdot = p.mn.startswith("v_dot")
        if vd:
            if c.cls == "mfma" and vd & (set(c.src) | set(c.srcc)):
                n = max(n, 3 if isdot else 2)
            if c.cls == "valu":
                rd = vd & set(c.src)
                if rd:
                    if c.mn.startswith("v_permlane") or c.dpp:
                        n = max(n, 2)
                    if c.mn.startswith(("v_readlane", "v_readfirstlane")):
                        n = max(n, 1)
                    if p.mn.startswith(TRANS) and not c.mn.startswith(TRANS):
                        n = max(n, 1)
                    if "sdwa" in p.mn:
                        n = max(n, 1)
                if isdot and (rd or vd & set(c.dst)):
                    same = c.mn == p.mn
                    if same:
                        ab = set(c.src[:-len(c.dst)] if c.dst else c.src)
                        if vd & ab:
                            n = max(n, 3)
                    else:
                        n = max(n, 3)
            if isdot and c.cls in ("ds", "vmem") and vd & (set(c.src) | set(c.dst)):
                n = max(n, 3)
        if sd:
            if c.cls == "valu" and sd & set(c.src):
                n = max(n, 4 if c.mn.startswith(("v_readlane", "v_writelane")) else 2)
            if c.cls == "vmem" and sd & set(c.src):
                n = max(n, 5)
            if c.cls == "mfma" and ("s", 126) in sd:
                n = max(n, 4)
    elif p.cls == "mfma":
        big = mfma_big(p)
        if c.cls == "mfma":
            if pd & set(c.src):
                n = max(n, big)
            if pd & set(c.srcc):
                if c.srcc == p.dst and c.passes == p.passes and c.sgemm == p.sgemm:
                    pass
                elif p.sgemm and not c.sgemm:
                    pass
                else:
                    n = max(n, big - 2)
            elif pd & set(c.dst):
                n = max(n, big)
        elif c.cls in ("valu", "ds", "vmem"):
            if pd & (set(c.src) | set(c.dst)):
                n = max(n, big)
        if c.cls == "valu" and set(p.srcc) & set(c.dst) and not p.sgemm:
            n = max(n, {4: 3, 8: 7, 16: 15}[p.passes])
    elif p.cls == "salu":
        if ("s", 124) in pd and c.lds_dma:
            n = max(n, 1)
    if p.wide_store and set(p.data) & set(c.dst):
        n = max(n, 2)
    return n


class Asm:
    def __init__(self):
        self.items = []
        self.vm = 0
        self.lg = 0
        self.vm_done = 0
        self.lg_done = 0
        self.smem = False
        self.nlabel = 0
        self.hook = None

    def raw(self, s):
        self.items.append(s)

    def comment(self, s):
        self.items.append("; " + s)

    def label(self, name):
        self.items.append(name + ":")

    def label_nf(self, name):
        self.items.append(("nf", name + ":"))

    def branch_nf(self, text):
        self.items.append(("nf", "    " + text))

    def newlabel(self, base):
        self.nlabel += 1
        return f"L_{base}_{self.nlabel}"

    def __call__(self, text):
        i = Ins(text)
        self.items.append(i)
        tok = None
        if i.cls == "vmem":
            self.vm += 1
            tok = ("vm", self.vm)
        elif i.cls == "ds":
            self.lg += 1
            tok = ("lg", self.lg)
        elif i.mn.startswith(("s_load", "s_memtime", "s_memrealtime", "s_buffer_load")):
            self.smem = True
        if self.hook and i.cls in ("valu", "mfma"):
            h, self.hook = self.hook, None
            h(i)
            self.hook = h
        return tok

    def wait(self, *toks):
        vm = max([t[1] for t in toks if t and t[0] == "vm"], default=0)
        lg = max([t[1] for t in toks if t and t[0] == "lg"], default=0)
        parts = []
        if vm > self.vm_done:
            n = self.vm - vm
            assert n <= 63, "vmcnt overflow"
            parts.append(f"vmcnt({n})")
            self.vm_done = vm
        if lg > self.lg_done:
            n = self.lg - lg
            if self.smem:
                n = 0
            if n > 15:
                n = 15
            parts.append(f"lgkmcnt({n})")
            self.lg_done = self.lg - n
            if n == 0:
                self.smem = False
        if parts:
            self("s_waitcnt " + " ".join(parts))

    def wait_vm(self, n=0):
        self(f"s_waitcnt vmcnt({n})")
        self.vm_done = max(self.vm_done, self.vm - n)

    def wait_lg(self):
        self("s_waitcnt lgkmcnt(0)")
        self.lg_done = self.lg
        self.smem = False

    def finalize(self):
        out = []
        hist = []
        total_nops = 0

        def emit_nops(k):
            nonlocal total_nops
            total_nops += k
            while k > 0:
                m = min(k, 16)
                out.append(f"    s_nop {m - 1}")
                k -= m

        def flush_all():
            worst = 0
            for p, el in hist:
                w = 0
                if p.cls == "mfma":
                    w = mfma_big(p)
                elif p.cls == "valu":
                    w = 5 if any(r[0] == "s" for r in p.dst) else 3
                elif p.wide_store:
                    w = 2
                elif p.cls == "salu" and ("s", 124) in p.dst:
                    w = 1
                worst = max(worst, w - el)
            if worst > 0:
                emit_nops(worst)
            hist.clear()

        for it in self.items:
            if isinstance(it, tuple):
                out.append(it[1])
                if not it[1].endswith(":"):
                    hist[:] = [(p, el + 1) for p, el in hist]
                continue
            if isinstance(it, str):
                if it.endswith(":") and not it.startswith(";"):
                    flush_all()
                out.append(it)
                continue
            if it.mn.startswith(("s_branch", "s_cbranch")):
                flush_all()
            req = 0
            for p, el in hist:
                req = max(req, need(p, it) - el)
            if req > 0:
                emit_nops(req)
                hist[:] = [(p, el + req) for p, el in hist]
            out.append("    " + it.text)
            hist[:] = [(p, el + it.states) for p, el in hist if el + it.states < 21]
            hist.append((it, 0))
        self.total_nops = total_nops
        return "\n".join(out) + "\n"


def kernel_text(body, lds, nvgpr=512, accum=256, grid=256, block=256, head_comment=""):
    s = head_comment
    s += f"; @launch grid=({grid},1,1) block=({block},1,1) lds={lds}\n"
    s += '.amdgcn_target "amdgcn-amd-amdhsa--gfx950"\n.text\n'
    s += f".globl {NAME}_kernel\n.p2align 8\n.type {NAME}_kernel,@function\n{NAME}_kernel:\n"
    s += body
    s += '.section .rodata,"a"\n.p2align 6\n'
    s += f".amdhsa_kernel {NAME}_kernel\n"
    s += f"  .amdhsa_next_free_vgpr {nvgpr}\n  .amdhsa_next_free_sgpr 102\n  .amdhsa_accum_offset {accum}\n"
    s += "  .amdhsa_group_segment_fixed_size 0\n  .amdhsa_kernarg_size 96\n  .amdhsa_user_sgpr_count 2\n"
    s += "  .amdhsa_user_sgpr_kernarg_segment_ptr 1\n  .amdhsa_system_sgpr_workgroup_id_x 1\n.end_amdhsa_kernel\n"
    return s
```

```python
import sys
from asmlib import *

WS_KVP = 0x0
WS_GB = 0x200000
GB_STRIDE = 0xB0000
GB_O, GB_HB, GB_ST, GB_FL, GB_H1 = 0x0, 0x1C000, 0x38000, 0x3A000, 0x40000
WS_RDY = 0xD00000
WS_KVR = 0xD10000
BSET = 0x1000000
WS_STAMP = 0x3000000
WS_BYTES = 268435456

PIECE = 1040
R0 = 0
R1 = 58368
XW = 16384
WQ0 = R1 + 65536
MISC = 158720
WP = MISC
CSP = MISC + 2048
CSQ = MISC
C1 = MISC + 4096
B1 = C1 + 448
ZW = B1 + 448
LDS_BYTES = 163840
EXS = 200
BNC = 14336

sWV, sG, sJ, sTH = 3, 4, 5, 6
SX, SWQKV, SWPHI, SWO, SW1, SB1, SW2, SB2, SOUT, SDBG, SWS = 8, 12, 16, 20, 24, 28, 32, 36, 40, 44, 48
sTOK, sWBASE, sXB, sWL, sBLK, sA, sB, sGB, sONE, sLOC, sW2, sW2L, sPAT, sCNT = range(56, 70)
sC, sD, sE, sF = 52, 53, 54, 55
sT0, sT1, sT2, sT3 = 70, 71, 72, 73
sXW, sTB, sT2W = 96, 97, 98
sBG, sWO = 74, 75
sSTAMP = 76
sNON = 100
LOG2E = 0x3fb8aa3b
SPIN = 0x4000

vL16, vW2G, vW2A = 1, 2, (3, 4)
VXR = 232
vWOG, vW1G = 230, 229

KORD = [0, 1, 4, 5, 7, 8, 11, 12, 2, 6, 9, 13, 3, 10]


def srd(n):
    return f"s[{n}:{n + 3}]"


def vr(n, k):
    return f"v[{n}:{n + k - 1}]"


def ar(n, k):
    return f"a[{n}:{n + k - 1}]"


class Gen:
    def __init__(self, upto=99, stamps=False, **opt):
        self.a = Asm()
        self.upto = upto
        self.stamps = stamps
        self.nstamp = 0
        self.stamp_names = stamps.split(",") if isinstance(stamps, str) else []
        self.stamp_log = []
        self.ool = []
        self.opt = dict(force_slow=0, touch=0, o_delay=40, rt=0, nb=16, cpos=60, rotj=1, rotg=3, tp="",
                        n0=3, p0=9, f0=6, tch=2, w2a=1, w2p=11)
        self.opt.update(opt)
        self.tok = {}
        self.tplan = {}
        for it in self.opt["tp"].split("/"):
            if it:
                n, p = it.split(":")
                self.tplan.setdefault(p, []).append(n)

    def stamp(self, name):
        if name in self.stamp_names and self.nstamp < 10:
            self.stamp_log.append(name)
            r = sSTAMP + 2 * self.nstamp
            self.a(f"{'s_memrealtime' if self.opt['rt'] else 's_memtime'} s[{r}:{r + 1}]")
            self.nstamp += 1

    def make_srd(self, dst, nbytes):
        a = self.a
        a(f"s_and_b32 s{dst + 1}, s{dst + 1}, 0xffff")
        a(f"s_mov_b32 s{dst + 2}, {nbytes}")
        a(f"s_mov_b32 s{dst + 3}, 0x00020000")

    def dual(self, lines):
        a = self.a
        Ls, Lb = a.newlabel("slow"), a.newlabel("back")
        a(f"s_cmp_eq_u32 s{sLOC}, 0")
        a.branch_nf(f"s_cbranch_scc1 {Ls}")
        tok = None
        for t in lines:
            k = a(t.replace(" @", ""))
            tok = k or tok
        a.label_nf(Lb)
        self.ool += [Ls + ":", "    s_nop 15", "    s_nop 7"]
        for t in lines:
            self.ool += ["    " + t.replace(" @", " sc1"), "    s_nop 1"]
        self.ool += ["    s_nop 7", f"    s_branch {Lb}"]
        return tok

    def sent_check(self, regs, acc, first=True):
        a = self.a
        regs = list(regs)
        if first:
            x, y, z = regs[:3]
            a(f"v_max3_u32 v{acc}, v{x}, v{y}, v{z}")
            regs = regs[3:]
        while len(regs) >= 2:
            a(f"v_max3_u32 v{acc}, v{regs[0]}, v{regs[1]}, v{acc}")
            regs = regs[2:]
        if regs:
            a(f"v_max_u32 v{acc}, v{regs[0]}, v{acc}")

    def verify(self, acc, loads, regs, post=()):
        a = self.a
        Lr, Lb = a.newlabel("retry"), a.newlabel("ok")
        a(f"v_cmp_eq_u32 vcc, -1, v{acc}")
        a.branch_nf(f"s_cbranch_vccnz {Lr}")
        a.label_nf(Lb)
        b = Asm()
        for t in loads:
            b(t)
        b("s_waitcnt vmcnt(0)")
        for t in post:
            b(t)
        keep = self.a
        self.a = b
        self.sent_check(regs, acc)
        self.a = keep
        b(f"v_cmp_eq_u32 vcc, -1, v{acc}")
        b(f"s_sub_u32 s{sCNT}, s{sCNT}, 1")
        b(f"s_cbranch_scc1 {Lr}x")
        b(f"s_cbranch_vccnz {Lr}l")
        self.ool += [Lr + ":", "    s_nop 15", "    s_nop 7", f"    s_mov_b32 s{sCNT}, {SPIN}", Lr + "l:"]
        self.ool += b.finalize().rstrip("\n").split("\n")
        self.ool += [Lr + "x:", "    s_nop 7", f"    s_branch {Lb}"]

    def spin(self, loads, regs, acc, name):
        a = self.a
        L, Lx = a.newlabel(name), a.newlabel(name + "x")
        a(f"s_mov_b32 s{sCNT}, {SPIN}")
        a.label(L)
        for t in loads:
            a(t)
        a.wait_vm(0)
        self.sent_check(regs, acc)
        a(f"v_cmp_eq_u32 vcc, -1, v{acc}")
        a(f"s_sub_u32 s{sCNT}, s{sCNT}, 1")
        a.branch_nf(f"s_cbranch_scc1 {Lx}")
        a.branch_nf(f"s_cbranch_vccnz {L}")
        a.label_nf(Lx)

    def w2_issue(self, r):
        out = []
        for i in range(14):
            m, e = 7 * r + i // 2, i & 1
            s, sub = KORD[m >> 1], m & 1
            row0 = 32 * s + 16 * e + 8 * sub
            out.append([f"s_add_u32 m0, s{sW2L}, {i * 1024}",
                        f"s_add_u32 s{sBG}, s{sW2}, {row0 * 896}",
                        f"buffer_load_dwordx4 v{vW2G}, {srd(SW2)}, s{sBG} offen lds"])
        return out

    def w2_consume(self, r):
        out = []
        for i in range(7):
            m = 7 * r + i
            for c in range(2):
                for e in range(2):
                    out.append(f"ds_read_b64_tr_b16 {ar(8 * m + 4 * c + 2 * e, 2)}, v{vW2A[c]} "
                               f"offset:{(2 * i + e) * 1024}")
        return out

    def wo_issue(self):
        return [[f"s_add_u32 m0, s{sW2L}, {i * 1024}",
                 f"s_add_u32 s{sBG}, s{sWO}, {i * 8 * 896}",
                 f"buffer_load_dwordx4 v{vWOG}, {srd(SWO)}, s{sBG} offen lds"] for i in range(14)]

    def w1_issue(self, lo, hi):
        return [[f"s_add_u32 m0, s{sWL}, {R1 + i * 3584}",
                 f"s_add_u32 s{sBG}, s{sBLK}, {i * 16 * 3584}",
                 "s_mov_b32 exec_hi, 0x00ffffff",
                 f"buffer_load_dwordx4 v{vW1G}, {srd(SW1)}, s{sBG} offen lds",
                 "s_mov_b32 exec_hi, -1"] for i in range(lo, hi)]

    def bg_start(self, groups, name, period, first=None):
        self.bgq = list(groups)
        self.bg_name, self.bg_period = name, period
        self.bg_cnt = period - (first if first is not None else period)
        self.a.hook = self.bg_hook

    def bg_hook(self, ins):
        self.bg_cnt += 1
        if self.bgq and self.bg_cnt >= self.bg_period:
            self.bg_cnt = 0
            self.tok[self.bg_name] = self.emit(self.bgq.pop(0))

    def bg_pause(self):
        self.a.hook = None

    def bg_resume(self):
        self.a.hook = self.bg_hook

    def bg_finish(self):
        self.a.hook = None
        while self.bgq:
            self.tok[self.bg_name] = self.emit(self.bgq.pop(0))
        return self.tok[self.bg_name]

    def touch(self, point, vT27, vT48, vD):
        a = self.a
        for name in self.tplan.get(point, []):
            if name in ("2a", "2b", "2c", "2d"):
                hi_ = name in ("2c", "2d")
                a(f"s_mov_b32 s7, {0xA3D962C if hi_ else 0xB875410}")
                a(f"s_lshr_b32 s7, s7, s{sTB}")
                a("s_and_b32 s7, s7, 15")
                a(f"s_mul_i32 s7, s7, {32 * 896}")
                a(f"s_add_u32 s{sBG}, s7, s{sT2W}")
                off = " offset:3584" if name in ("2b", "2d") else ""
                a(f"buffer_load_dword v{vD}, v{vT27}, {srd(SW2)}, s{sBG} offen{off}")
            elif name == "wo":
                a(f"s_min_u32 s7, s{sXW}, 111")
                a(f"s_mul_i32 s{sBG}, s7, 3584")
                a(f"buffer_load_dword v{vD}, v{vT27}, {srd(SWO)}, s{sBG} offen")
            elif name in ("1a", "1b"):
                a(f"s_mul_i32 s{sBG}, s{sXW}, 6272")
                if name == "1b":
                    a(f"s_add_u32 s{sBG}, s{sBG}, {224 * 3584}")
                a(f"buffer_load_dword v{vD}, v{vT48}, {srd(SW1)}, s{sBG} offen")
            elif name == "out":
                a(f"s_mul_i32 s{sBG}, s2, 7168")
                a(f"buffer_load_dword v{vD}, off, {srd(SOUT)}, s{sBG}")
            else:
                raise ValueError(name)

    def spin_ool(self, name, loads, chk):
        a = self.a
        Lr, Lb = a.newlabel(name), a.newlabel(name + "ok")
        self.emit(chk)
        a.branch_nf(f"s_cbranch_vccnz {Lr}")
        a.label_nf(Lb)
        b = Asm()
        for t in loads:
            b(t)
        b("s_waitcnt vmcnt(0)")
        for t in chk:
            b(t)
        b(f"s_sub_u32 s{sCNT}, s{sCNT}, 1")
        b(f"s_cbranch_scc1 {Lr}x")
        b(f"s_cbranch_vccnz {Lr}l")
        self.ool += [Lr + ":", "    s_nop 15", "    s_nop 7", f"    s_mov_b32 s{sCNT}, {SPIN}", Lr + "l:"]
        self.ool += b.finalize().rstrip("\n").split("\n")
        self.ool += [Lr + "x:", "    s_nop 7", f"    s_branch {Lb}"]

    def emit(self, lines):
        tok = None
        for t in lines:
            k = self.a(t)
            tok = k or tok
        return tok

    def feature_map(self, P, EP, EN, sc, padb, T, OUTP, OUTN, mid=None):
        a = self.a
        mx, nm = T, T + 1
        a(f"v_max3_f32 v{mx}, v{P}, v{P + 1}, v{P + 2}")
        a(f"v_max3_f32 v{nm}, -v{P}, -v{P + 1}, -v{P + 2}")
        for i in range(3, 15, 2):
            a(f"v_max3_f32 v{mx}, v{mx}, v{P + i}, v{P + i + 1}")
            a(f"v_max3_f32 v{nm}, v{nm}, -v{P + i}, -v{P + i + 1}")
        a(f"v_max_f32 v{mx}, v{mx}, v{P + 15}")
        a(f"v_max_f32_e64 v{nm}, -v{P + 15}, v{nm}")
        a(f"v_permlane32_swap_b32 v{mx}, v{nm}")
        a(f"v_max_f32 v{mx}, v{mx}, v{nm}")
        a(f"v_mul_f32 v{mx}, v{mx}, v{sc}")
        a(f"v_sub_f32 v{mx}, 0, v{mx}")
        bp, bn, bp2, bn2 = T + 2, T + 4, T + 6, T
        a(f"v_mov_b32 v{bp}, v{mx}")
        a(f"v_mov_b32 v{bn}, v{mx}")
        a(f"v_permlane32_swap_b32 v{bp}, v{bn}")
        a(f"v_add_f32 v{bp2}, v{bp}, v{padb}")
        a(f"v_add_f32 v{bn2}, v{bn}, v{padb}")
        for i in range(0, 16, 2):
            b = bp if i < 12 else bp2
            a(f"v_pk_fma_f32 {vr(EP + i, 2)}, {vr(P + i, 2)}, {vr(sc, 2)}, {vr(b, 2)} op_sel_hi:[1,0,0]")
        for i in range(0, 16, 2):
            b = bn if i < 12 else bn2
            a(f"v_pk_fma_f32 {vr(EN + i, 2)}, {vr(P + i, 2)}, {vr(sc, 2)}, {vr(b, 2)} op_sel_hi:[1,0,0] "
              f"neg_lo:[1,0,0] neg_hi:[1,0,0]")
        if mid:
            mid()
        for i in range(16):
            a(f"v_exp_f32 v{EP + i}, v{EP + i}")
        for i in range(16):
            a(f"v_exp_f32 v{EN + i}, v{EN + i}")
        sp, sn = T, T + 2
        for (E, s) in ((EP, sp), (EN, sn)):
            a(f"v_pk_add_f32 {vr(s, 2)}, {vr(E, 2)}, {vr(E + 2, 2)}")
        for i in range(4, 16, 2):
            for (E, s) in ((EP, sp), (EN, sn)):
                a(f"v_pk_add_f32 {vr(s, 2)}, {vr(s, 2)}, {vr(E + i, 2)}")
        a(f"v_add_f32 v{sp}, v{sp}, v{sp + 1}")
        a(f"v_add_f32 v{sn}, v{sn}, v{sn + 1}")
        a(f"v_permlane32_swap_b32 v{sp}, v{sn}")
        a(f"v_add_f32 v{sp}, v{sp}, v{sn}")
        a(f"v_rcp_f32 v{sp}, v{sp}")
        a(f"v_mov_b32 v{sn}, v{sp}")
        a(f"v_permlane32_swap_b32 v{sp}, v{sn}")
        for (E, s, O) in ((EP, sp, OUTP), (EN, sn, OUTN)):
            for i in range(0, 16, 2):
                a(f"v_pk_mul_f32 {vr(E + i, 2)}, {vr(E + i, 2)}, {vr(s, 2)} op_sel_hi:[1,0]")
            for i in range(0, 16, 2):
                a(f"v_cvt_pk_bf16_f32 v{O + i // 2}, v{E + i}, v{E + i + 1}")

    def prologue(self):
        a = self.a
        a("s_cmp_ge_u32 s2, 256")
        a("s_cbranch_scc1 L_end")
        for dst, off in ((SX, 0), (SWQKV, 8), (SWPHI, 16), (SWO, 24), (SW1, 40), (SB1, 48), (SW2, 56), (SB2, 64),
                         (SOUT, 72), (SDBG, 80), (SWS, 88)):
            a(f"s_load_dwordx2 s[{dst}:{dst + 1}], s[0:1], {off}")
        self.stamp("start")
        a("v_lshrrev_b32 v1, 6, v0")
        a("v_and_b32 v0, 63, v0")
        a(f"v_readfirstlane_b32 s{sWV}, v1")
        a("s_and_b32 s7, s2, 7")
        a("s_lshr_b32 s5, s2, 3")
        a("s_lshr_b32 s4, s5, 4")
        a("s_lshl_b32 s7, s7, 1")
        a(f"s_add_u32 s{sG}, s4, s7")
        a(f"s_and_b32 s{sJ}, s5, 15")

    def stage1(self):
        a = self.a
        opt = self.opt
        vXE, vXO, vWG, vQG = 5, 6, 7, 8
        vXA = [9, 10, 11, 12]
        vWK0, vWK1, vWVv = 13, 14, 15
        vTG = [16, 17, 18, 25]
        vWQ, vTCH, vEXW, vEXA, vEXB, vPAD, vP0, vP3 = 19, 20, 21, 22, 23, 24, 26, 27
        ssq0, ssq1, t0, t1 = 28, 29, 30, 31
        AK, AV, AQ = 32, 48, 64
        WPH = 80
        csK, csV = (88, 89), (90, 91)
        vNM, vRS = 92, 94
        WB = 96
        XF = 128
        TS, vSC = 240, 248
        vRG, vNON, vFF = 249, 250, 252
        vTD = 95
        sSH = sT3
        sXc, sWc, sRC, sROT = sLOC, sBLK, sF, 99
        a(f"v_lshrrev_b32 v{t0}, 3, v0")
        a(f"v_lshrrev_b32 v{t1}, 4, v0")
        a(f"v_and_b32 v{vXE}, 7, v0")
        a(f"v_xor_b32 v{vXE}, v{vXE}, v{t1}")
        a(f"v_lshlrev_b32 v{vXE}, 4, v{vXE}")
        a("s_movk_i32 s7, 896")
        a(f"v_mad_u32_u24 v{vXE}, v{t0}, s7, v{vXE}")
        a(f"v_xor_b32 v{vXO}, 64, v{vXE}")
        a(f"v_lshrrev_b32 v{vWG}, 2, v0")
        a(f"v_xor_b32 v{vWG}, v{vWG}, v{t1}")
        a(f"v_and_b32 v{vWG}, 1, v{vWG}")
        a(f"v_add_u32 v{vWG}, 1, v{vWG}")
        a(f"v_mul_u32_u24 v{vWG}, s7, v{vWG}")
        a("s_movk_i32 s7, 2688")
        a(f"v_mad_u32_u24 v{vWG}, v{t0}, s7, v{vWG}")
        a(f"v_and_b32 v{t1}, 3, v0")
        a(f"v_lshl_add_u32 v{vWG}, v{t1}, 4, v{vWG}")
        a(f"s_lshl_b32 s{sTOK}, s{sG}, 2")
        a(f"s_add_u32 s{sTOK}, s{sTOK}, s{sWV}")
        a(f"s_mul_i32 s{sTOK}, s{sTOK}, {32 * 896}")
        a(f"s_cmp_eq_u32 s{sJ}, 15")
        a(f"s_cselect_b32 s{sSH}, 8, 0")
        a(f"s_mul_i32 s{sWBASE}, s{sWV}, {16 * 2688}")
        a(f"s_mul_i32 s{sT2}, s{sJ}, 56")
        a(f"s_sub_u32 s{sT2}, s{sT2}, s{sSH}")
        a(f"s_add_u32 s{sWBASE}, s{sWBASE}, s{sT2}")
        a(f"s_mul_i32 s{sXB}, s{sWV}, {XW}")
        a(f"s_add_u32 s{sXB}, s{sXB}, {R1}")
        a(f"s_mul_i32 s{sWL}, s{sWV}, {2 * PIECE}")
        a(f"s_and_b32 s7, s{sG}, 1")
        a(f"s_mul_i32 s7, s7, {opt['rotg']}")
        a(f"s_mul_i32 s{sROT}, s{sJ}, {opt['rotj']}")
        a(f"s_add_u32 s{sROT}, s{sROT}, s7")
        a(f"s_mul_i32 s7, s{sROT}, 37")
        a("s_lshr_b32 s7, s7, 8")
        a("s_mul_i32 s7, s7, 7")
        a(f"s_sub_u32 s{sROT}, s{sROT}, s7")
        a(f"s_sub_u32 s{sRC}, 7, s{sROT}")
        a(f"s_lshl_b32 s7, s{sROT}, 7")
        a(f"s_add_u32 s{sXc}, s{sTOK}, s7")
        a(f"s_mul_i32 s7, s{sROT}, {64 * 2688}")
        a(f"s_add_u32 s{sWc}, s{sWBASE}, s7")
        a.wait_lg()
        self.make_srd(SX, 2048 * 896)
        self.make_srd(SWQKV, 448 * 2688)
        self.stamp("karg")
        slot_tok = {}

        def slot_lines(i):
            o = [[f"s_add_u32 m0, s{sWL}, {8 * PIECE * i}",
                  f"buffer_load_dwordx4 v{vWG}, {srd(SWQKV)}, s{sWc} offen lds"],
                 [f"s_add_u32 s{sBG}, s{sWc}, {8 * 2688 - PIECE}",
                  f"buffer_load_dwordx4 v{vWG}, {srd(SWQKV)}, s{sBG} offen offset:{PIECE} lds"]]
            for q in range(4):
                vo = vXO if q & 1 else vXE
                g = [f"s_add_u32 m0, s{sXB}, {4096 * (i % 4)}"] if q == 0 else []
                if q:
                    g.append(f"s_add_u32 s{sBG}, s{sXc}, {6144 * q}")
                off = f" offset:{1024 * q}" if q else ""
                if q == 3 and i < 6:
                    g += [f"s_add_u32 s{sXc}, s{sXc}, 128",
                          f"s_add_u32 s{sWc}, s{sWc}, {64 * 2688}",
                          f"s_sub_u32 s{sRC}, s{sRC}, 1",
                          f"s_cmp_eq_u32 s{sRC}, 0",
                          f"s_cselect_b32 s{sXc}, s{sTOK}, s{sXc}",
                          f"s_cselect_b32 s{sWc}, s{sWBASE}, s{sWc}"]
                g.append(f"buffer_load_dwordx4 v{vo}, {srd(SX)}, s{sBG if q else sXc} offen{off} lds")
                o.append(g)
            return o

        n0 = opt["n0"]
        pre = slot_lines(0) + slot_lines(1) + slot_lines(2)
        vm0 = a.vm
        self.emit(sum(pre[:n0], []))
        self.stamp("burst")
        self.make_srd(SWPHI, 16 * 1568)
        self.make_srd(SWO, 448 * 896)
        self.make_srd(SW1, 448 * 3584)
        self.make_srd(SB1, 3584)
        self.make_srd(SW2, 1792 * 896)
        self.make_srd(SB2, 896)
        self.make_srd(SOUT, 2048 * 896)
        self.make_srd(SDBG, 256)
        self.make_srd(SWS, WS_BYTES)
        a(f"s_or_b32 s7, s2, s{sWV}")
        a("s_cmp_lg_u32 s7, 0")
        a("s_cbranch_scc1 L_nononce")
        a(f"s_memrealtime s[{sC}:{sD}]")
        a.wait_lg()
        a(f"s_lshl_b32 s{sD}, s{sD}, 4")
        a(f"s_or_b32 s{sD}, s{sD}, 0x40000000")
        a(f"v_mov_b32 v{vNON}, s{sC}")
        a(f"v_mov_b32 v{vNON + 1}, s{sD}")
        a("s_mov_b64 exec, 1")
        a.raw(f"    buffer_store_dwordx2 {vr(vNON, 2)}, off, {srd(SDBG)}, 0 sc1")
        a("s_mov_b64 exec, -1")
        a("s_nop 1")
        a.label("L_nononce")
        extra0 = 0
        self.bg_start(pre[n0:], "pre", opt["p0"], opt["f0"])
        a(f"v_lshlrev_b32 v{vL16}, 4, v0")
        sKVO = sT0
        for r in range(4):
            a(f"v_mov_b32 v{vFF + r}, -1")
        a(f"s_mul_i32 s{sGB}, s{sG}, {GB_STRIDE}")
        a(f"s_add_u32 s{sGB}, s{sGB}, {WS_GB}")
        a(f"s_lshl_b32 s{sKVO}, s{sJ}, 4")
        a(f"s_add_u32 s{sKVO}, s{sKVO}, s{sG}")
        a(f"s_lshl_b32 s{sKVO}, s{sKVO}, 2")
        a(f"s_add_u32 s{sKVO}, s{sKVO}, s{sWV}")
        a(f"s_lshl_b32 s{sKVO}, s{sKVO}, 11")
        a(f"s_getreg_b32 s{sPAT}, hwreg(HW_REG_XCC_ID, 0, 4)")
        hi, r4, c4, g1, tt, cm, cw = 100, 101, 102, 103, 104, 105, 106
        a(f"v_lshrrev_b32 v{hi}, 5, v0")
        a(f"v_bfe_u32 v{r4}, v0, 2, 2")
        a(f"v_and_b32 v{c4}, 3, v0")
        a(f"v_bfe_u32 v{g1}, v0, 4, 1")
        a(f"v_and_b32 v{tt}, 31, v0")
        a(f"v_bfe_u32 v{t0}, v0, 1, 3")
        a(f"v_xor_b32 v{t0}, v{t0}, v{hi}")
        a(f"v_lshlrev_b32 v{t1}, 7, v{tt}")
        a(f"v_add_u32 v{t1}, s{sXB}, v{t1}")
        for ks in range(4):
            a(f"v_xor_b32 v{vXA[ks]}, {2 * ks}, v{t0}")
            a(f"v_lshl_add_u32 v{vXA[ks]}, v{vXA[ks]}, 4, v{t1}")
        a(f"v_lshlrev_b32 v{cm}, 5, v{g1}")
        a(f"v_lshl_add_u32 v{cm}, v{c4}, 3, v{cm}")
        a(f"v_add_u32 v{cw}, s{sSH}, v{cm}")
        a(f"v_min_u32 v{cw}, 56, v{cw}")
        a(f"v_mul_u32_u24 v{t0}, {PIECE}, v{hi}")
        a(f"v_lshl_add_u32 v{t0}, v{r4}, 7, v{t0}")
        a(f"v_add_u32 v{t0}, v{t0}, v{cw}")
        a(f"v_lshrrev_b32 v{t1}, 1, v{r4}")
        a(f"v_lshl_add_u32 v{vWK0}, v{t1}, 6, v{t0}")
        a(f"v_xor_b32 v{t1}, 1, v{t1}")
        a(f"v_lshl_add_u32 v{vWVv}, v{t1}, 6, v{t0}")
        a(f"v_add_u32 v{vWK1}, 512, v{vWK0}")
        a(f"v_cmp_eq_u32 vcc, 56, v{cm}")
        a(f"v_mov_b32 v{t0}, 1024")
        a(f"v_cndmask_b32 v{vWK0}, v{vWK0}, v{t0}, vcc")
        a(f"v_cndmask_b32 v{vWK1}, v{vWK1}, v{t0}, vcc")
        a(f"v_min_u32 v{t0}, 27, v0")
        a(f"v_mul_u32_u24 v{t0}, {2 * PIECE}, v{t0}")
        a("v_mov_b32 v108, 0x3f80")
        for r in (109, 110, 111, ssq0, ssq1) + csK + csV:
            a(f"v_mov_b32 v{r}, 0")
        a(f"ds_write_b64 v{t0}, v[108:109] offset:1024")
        a(f"v_mov_b32 v{t1}, {ZW}")
        a(f"ds_write_b64 v{t1}, v[110:111]")
        a(f"v_lshl_add_u32 v{t1}, v{hi}, 3, v{r4}")
        a(f"v_lshl_add_u32 v{t1}, v{t1}, 6, v{cw}")
        a(f"v_add_u32 v{vWQ}, {WQ0}, v{t1}")
        a(f"v_lshrrev_b32 v{vQG}, 2, v0")
        a("s_movk_i32 s7, 2688")
        a(f"v_mul_u32_u24 v{vQG}, s7, v{vQG}")
        a(f"v_lshl_add_u32 v{vQG}, v{c4}, 4, v{vQG}")
        a(f"v_subrev_u32 v{t0}, 8, v{cm}")
        a(f"v_cndmask_b32 v{t0}, v{cm}, v{t0}, vcc")
        a(f"v_lshl_add_u32 v{t1}, v{hi}, 2, v{r4}")
        a(f"v_mul_u32_u24 v{vP0}, 56, v{t1}")
        a(f"v_add_u32 v{vP0}, v{t0}, v{vP0}")
        a(f"v_add_u32 v{vP0}, {WP}, v{vP0}")
        a(f"v_add_u32 v{vP3}, {896 + 448}, v{vP0}")
        a(f"v_cmp_eq_u32 vcc, 1, v{hi}")
        a(f"v_mov_b32 v{t0}, {ZW}")
        a(f"v_cndmask_b32 v{vP3}, v{vP3}, v{t0}, vcc")
        a(f"v_mov_b32 v{t0}, 0xf149f2ca")
        a(f"v_cndmask_b32 v{vPAD}, 0, v{t0}, vcc")
        a(f"s_mul_i32 s{sW2L}, s{sWV}, {BNC}")
        a(f"v_lshl_add_u32 v{t1}, v{t1}, 7, v{cm}")
        a(f"v_add_u32 v{t1}, s{sW2L}, v{t1}")
        a(f"s_lshr_b32 s7, s{sWV}, 1")
        a(f"v_lshrrev_b32 v{t0}, 1, v{r4}")
        a(f"v_xor_b32 v{t0}, s7, v{t0}")
        a(f"v_lshl_add_u32 v{vW2A[0]}, v{t0}, 6, v{t1}")
        a(f"v_xor_b32 v{vW2A[1]}, 64, v{vW2A[0]}")
        a(f"v_lshrrev_b32 v{t0}, 2, v0")
        a(f"v_and_b32 v{t0}, 4, v{t0}")
        a(f"v_and_b32 v{t1}, 7, v0")
        a(f"v_xor_b32 v{t0}, v{t0}, v{t1}")
        a(f"v_lshrrev_b32 v{t1}, 3, v0")
        a(f"v_mul_u32_u24 v{t1}, 896, v{t1}")
        a(f"v_lshl_add_u32 v{vW2G}, v{t0}, 4, v{t1}")
        a(f"s_sub_u32 s7, s{sJ}, 7")
        a(f"s_cmp_ge_u32 s{sJ}, 7")
        a(f"s_cselect_b32 s{sT1}, s7, s{sJ}")
        a(f"s_cselect_b32 s{sTH}, 1, 0")
        a(f"s_sub_u32 s7, s{sT1}, 7")
        a(f"s_cmp_ge_u32 s{sT1}, 7")
        a(f"s_cselect_b32 s{sT1}, s7, s{sT1}")
        a(f"s_mul_i32 s{sW2}, s{sWV}, {448 * 896}")
        a(f"s_lshl_b32 s7, s{sT1}, 7")
        a(f"s_add_u32 s{sW2}, s{sW2}, s7")
        a(f"s_mul_i32 s{sWO}, s{sWV}, {112 * 896}")
        a(f"s_add_u32 s{sWO}, s{sWO}, s7")
        a(f"v_mul_u32_u24 v{vEXW}, {EXS}, v{tt}")
        a(f"v_lshl_add_u32 v{vEXW}, v{hi}, 3, v{vEXW}")
        a(f"v_add_u32 v{vEXW}, s{sXB}, v{vEXW}")
        a(f"v_lshrrev_b32 v{t0}, 2, v0")
        a(f"v_mul_u32_u24 v{t0}, {EXS}, v{t0}")
        a(f"v_lshl_add_u32 v{t0}, v{c4}, 3, v{t0}")
        a(f"v_add_u32 v{vEXB}, {R1 + 128}, v{t0}")
        a(f"s_lshl_b32 s7, s{sWV}, 5")
        a(f"s_add_u32 s7, s7, {R1}")
        a(f"v_add_u32 v{vEXA}, s7, v{t0}")
        a(f"s_mov_b32 s{sONE}, 0x3f803f80")
        a(f"v_and_b32 v{t1}, 15, v0")
        a(f"s_lshl_b32 s7, s{sG}, 4")
        a(f"v_add_u32 v{vRG}, s7, v{t1}")
        a(f"v_lshl_add_u32 v{t1}, v{t1}, 4, s{sJ}")
        a(f"v_cmp_eq_u32 vcc, 0, v{g1}")
        a(f"v_cndmask_b32 v{vRG}, v{t1}, v{vRG}, vcc")
        a(f"v_lshlrev_b32 v{vRG}, 3, v{vRG}")
        a(f"v_add_u32 v{vRG}, {WS_RDY}, v{vRG}")
        a(f"v_min_u32 v{vTCH}, 55, v0")
        a(f"v_lshlrev_b32 v{vTCH}, 7, v{vTCH}")
        sKVR = sE
        a(f"s_lshl_b32 s{sKVR}, s{sJ}, 2")
        a(f"s_add_u32 s{sKVR}, s{sKVR}, s{sWV}")
        a(f"s_lshl_b32 s{sXW}, s{sKVR}, 12")
        a(f"s_add_u32 s{sXW}, s{sXW}, s{sGB}")
        a(f"s_mul_i32 s{sTB}, s{sKVR}, 7168")
        a(f"s_add_u32 s{sTB}, s{sTB}, s{sGB}")
        a(f"s_add_u32 s{sTB}, s{sTB}, {GB_H1}")
        a(f"s_lshl_b32 s{sKVR}, s{sKVR}, 4")
        a(f"s_add_u32 s{sKVR}, s{sKVR}, s{sG}")
        a(f"s_lshl_b32 s{sKVR}, s{sKVR}, 6")
        a(f"s_add_u32 s{sKVR}, s{sKVR}, {WS_KVR}")
        self.stamp("setup")
        self.bg_finish()
        for i in range(3):
            slot_tok[i] = ("vm", vm0 + 6 * (i + 1))
        a(f"s_mul_i32 s{sA}, s{sJ}, 1568")
        a(f"s_mul_i32 s7, s{sWV}, 400")
        a(f"s_add_u32 s{sA}, s{sA}, s7")
        a(f"s_add_u32 m0, s7, {WP}")
        a("s_mov_b64 exec, 0x1ffffff")
        tk_wp = a(f"buffer_load_dwordx4 v{vL16}, {srd(SWPHI)}, s{sA} offen lds")
        a("s_mov_b64 exec, -1")
        a.wait_lg()
        self.stamp("issued")

        def reads(i, ks):
            n = 4 * i + ks
            wb = WB + 8 * ks
            a(f"ds_read_b64_tr_b16 {vr(wb, 2)}, v{vWK0} offset:{n * 2 * PIECE}")
            a(f"ds_read_b64_tr_b16 {vr(wb + 2, 2)}, v{vWK1} offset:{n * 2 * PIECE}")
            k = a(f"ds_read_b128 {vr(XF + 4 * n, 4)}, v{vXA[ks]} offset:{(i % 4) * 4096}")
            a(f"ds_read_b64_tr_b16 {vr(wb + 4, 2)}, v{vWVv} offset:{n * 2 * PIECE}")
            return k, a(f"ds_read_b64_tr_b16 {vr(wb + 6, 2)}, v{vWVv} offset:{n * 2 * PIECE + 512}")

        def ck_dots(ks):
            for d in range(4):
                a(f"v_dot2_f32_bf16 v{csK[d & 1]}, v{WB + 8 * ks + d}, s{sONE}, v{csK[d & 1]}")

        def cv_dots(ks):
            for d in range(4):
                a(f"v_dot2_f32_bf16 v{csV[d & 1]}, v{WB + 8 * ks + 4 + d}, s{sONE}, v{csV[d & 1]}")

        def sq_dots(n):
            for d in range(4):
                r = XF + 4 * n + d
                s = ssq1 if d & 1 else ssq0
                a(f"v_dot2_f32_bf16 v{s}, v{r}, v{r}, v{s}")

        def mmk(i, ks):
            n = 4 * i + ks
            a(f"v_mfma_f32_32x32x16_bf16 {vr(AK, 16)}, {vr(WB + 8 * ks, 4)}, {vr(XF + 4 * n, 4)}, "
              f"{vr(AK, 16) if n else 0}")

        def mmv(i, ks):
            n = 4 * i + ks
            a(f"v_mfma_f32_32x32x16_bf16 {vr(AV, 16)}, {vr(WB + 8 * ks + 4, 4)}, {vr(XF + 4 * n, 4)}, "
              f"{vr(AV, 16) if n else 0}")

        def wq_lines():
            o = []
            for q in range(7):
                g = []
                if q == 0:
                    g += [f"s_mul_i32 s{sC}, s{sWV}, 7",
                          f"s_lshl_b32 s7, s{sROT}, 2",
                          f"s_add_u32 s{sC}, s{sC}, s7",
                          f"s_mul_i32 s{sD}, s{sWV}, 7168"]
                else:
                    g.append(f"s_add_u32 s{sC}, s{sC}, 1")
                g += [f"s_sub_u32 s7, s{sC}, 28",
                      f"s_cmp_ge_u32 s{sC}, 28",
                      f"s_cselect_b32 s{sC}, s7, s{sC}",
                      f"s_mul_i32 s{sBG}, s{sC}, {16 * 2688}",
                      f"s_add_u32 s{sBG}, s{sBG}, s{sT2}",
                      f"s_add_u32 m0, s{sD}, {WQ0 + 1024 * q}",
                      f"buffer_load_dwordx4 v{vQG}, {srd(SWQKV)}, s{sBG} offen lds"]
                o.append(g)
            return o

        non_ld = f"buffer_load_dwordx2 {vr(vNON, 2)}, off, {srd(SDBG)}, 0 sc1"
        rdy_ld = f"buffer_load_dwordx2 {vr(vNON, 2)}, v{vRG}, {srd(SWS)}, 0 offen sc1"
        clr = [[f"buffer_store_dwordx4 {vr(vFF, 4)}, v{vL16}, {srd(SWS)}, s{sXW} offen"
                f"{' offset:%d' % (1024 * q) if q else ''}"] for q in range(4)]
        clr.append(["s_mov_b64 exec, 15",
                    f"buffer_store_dwordx4 {vr(vFF, 4)}, v{vL16}, {srd(SWS)}, s{sKVR} offen sc1",
                    "s_mov_b64 exec, -1"])
        tch = [["s_mov_b32 exec_hi, 0",
                f"buffer_load_dword v{vTD}, v{vTCH}, {srd(SWS)}, s{sXW} offen",
                "s_mov_b32 exec_hi, -1"],
               [f"buffer_load_dword v{vTD}, v{vTCH}, {srd(SWS)}, s{sTB} offen"]]
        tch = tch[:opt["tch"]]
        for i in range(6):
            a.wait(slot_tok[i])
            self.stamp(f"w{i}")
            a("s_barrier")
            self.stamp(f"b{i}")
            r = [reads(i, 0), reads(i, 1)]
            bg = slot_lines(i + 3) if i <= 3 else ([[non_ld]] + wq_lines() if i == 4 else clr + tch)
            toks = []

            def bgl():
                if bg:
                    toks.append(self.emit(bg.pop(0)))

            for ks in range(4):
                a.wait(r[ks][0])
                mmk(i, ks)
                bgl()
                ck_dots(ks)
                if ks:
                    sq_dots(4 * i + ks - 1)
                elif i:
                    sq_dots(4 * i - 1)
                a.wait(r[ks][1])
                mmv(i, ks)
                if ks < 2:
                    r.append(reads(i, ks + 2))
                bgl()
                cv_dots(ks)
            assert not bg
            if i <= 3:
                slot_tok[i + 3] = toks[-1]
            elif i == 4:
                tk_non, tk_wq = toks[0], toks[-1]
            else:
                tk_clr = toks[4]
        i = 6
        a.wait(slot_tok[6], tk_wp)
        self.stamp("w6")
        a("s_barrier")
        self.stamp("b6")
        r = [reads(6, ks) for ks in range(4)]
        a(f"ds_read_b64_tr_b16 {vr(WPH, 2)}, v{vP0}")
        a(f"ds_read_b64_tr_b16 {vr(WPH + 2, 2)}, v{vP0} offset:448")
        a(f"ds_read_b64_tr_b16 {vr(WPH + 4, 2)}, v{vP0} offset:896")
        tk_ph = a(f"ds_read_b64_tr_b16 {vr(WPH + 6, 2)}, v{vP3}")
        sq_dots(23)
        for ks in range(4):
            a.wait(r[ks][0])
            mmk(6, ks)
            ck_dots(ks)
            sq_dots(24 + ks)
        a(f"v_add_f32 v{csK[0]}, v{csK[0]}, v{csK[1]}")
        a.wait(r[3][1])
        mmv(6, 0)
        self.stamp("gemm")
        a(f"v_add_f32 v{ssq0}, v{ssq0}, v{ssq1}")
        a(f"v_mov_b32 v{ssq1}, v{ssq0}")
        cv_dots(0)
        a(f"v_mov_b32 v{t0}, v{AK + 12}")
        a(f"v_mov_b32 v{t1}, v{AK + 12}")
        a(f"v_permlane32_swap_b32 v{ssq0}, v{ssq1}")
        a(f"v_permlane32_swap_b32 v{t0}, v{t1}")
        a(f"v_mul_f32 v{vNM}, 0xbb124925, v{t1}")
        a(f"v_add_f32 v{ssq0}, v{ssq0}, v{ssq1}")
        a(f"v_mul_f32 v{ssq0}, 0x3b124925, v{ssq0}")
        a(f"v_mfma_f32_32x32x2_f32 {vr(AK, 16)}, v{csK[0]}, v{vNM}, {vr(AK, 16)}")
        a(f"v_fma_f32 v{ssq0}, -v{vNM}, v{vNM}, v{ssq0}")
        a(f"v_add_f32 v{ssq0}, 0x3727c5ac, v{ssq0}")
        a(f"v_rsq_f32 v{vRS}, v{ssq0}")
        cv_dots(1)
        mmv(6, 1)
        cv_dots(2)
        cv_dots(3)
        a(f"v_mul_f32 v{vSC}, {LOG2E}, v{vRS}")
        a(f"v_add_f32 v{csV[0]}, v{csV[0]}, v{csV[1]}")
        KB = TS
        P = 64
        VB = WB
        for i in range(0, 16, 2):
            a(f"v_cvt_pk_bf16_f32 v{KB + i // 2}, v{AK + i}, v{AK + i + 1}")
        a.wait(tk_ph)
        a(f"v_mfma_f32_32x32x16_bf16 {vr(P, 16)}, {vr(WPH, 4)}, {vr(KB, 4)}, 0")
        a(f"v_mfma_f32_32x32x16_bf16 {vr(P, 16)}, {vr(WPH + 4, 4)}, {vr(KB + 4, 4)}, {vr(P, 16)}")
        mmv(6, 2)
        mmv(6, 3)
        a(f"v_mfma_f32_32x32x2_f32 {vr(AV, 16)}, v{csV[0]}, v{vNM}, {vr(AV, 16)}")
        a("s_barrier")
        self.stamp("prefm")
        if opt["w2a"]:
            self.bg_start(self.w2_issue(0), "w2", opt["w2p"], 4)
        EP, EN = AK, WB + 8
        OP, ON = WB + 24, P

        def v_part():
            for i in range(16):
                a(f"v_mul_f32 v{AV + i}, v{AV + i}, v{vRS}")
            for i in range(0, 16, 2):
                a(f"v_cvt_pk_bf16_f32 v{VB + i // 2}, v{AV + i}, v{AV + i + 1}")
            hk, a.hook = a.hook, None
            a("s_mov_b32 exec_lo, 0")
            a(f"v_mov_b32 v{VB + 6}, 0x3f80")
            a(f"v_mov_b32 v{VB + 7}, 0")
            a("s_mov_b32 exec_lo, -1")
            a.hook = hk
            for q in range(4):
                a(f"ds_write_b64 v{vEXW}, {vr(VB + 2 * q, 2)} offset:{128 + 16 * q}")

        self.feature_map(P, EP, EN, vSC, vPAD, TS, OP, ON, mid=v_part)
        for q in range(4):
            a(f"ds_write_b64 v{vEXW}, {vr(OP + 2 * q, 2)} offset:{16 * q}")
        for q in range(4):
            a(f"ds_write_b64 v{vEXW}, {vr(ON + 2 * q, 2)} offset:{64 + 16 * q}")
        tk_w2 = self.bg_finish() if opt["w2a"] else None
        self.stamp("postfm")
        a.wait(tk_non)
        self.spin_ool("non", [non_ld], [f"v_cmp_eq_u32 vcc, 0, v{vNON + 1}"])
        a(f"v_readfirstlane_b32 s{sNON}, v{vNON}")
        a(f"v_readfirstlane_b32 s{sNON + 1}, v{vNON + 1}")
        for k in range(4):
            a(f"v_bfe_u32 v{vTG[k]}, v{vNON}, {8 * k}, 8")
        a.wait(tk_wq, tk_clr)
        a.wait_lg()
        a("s_barrier")
        self.stamp("bx")
        FB = AK
        KA = WB

        def kv_reads(z):
            fb = FB + 12 * z
            o = z * XW
            for e in range(2):
                a(f"ds_read_b64_tr_b16 {vr(fb + 2 * e, 2)}, v{vEXA} offset:{o + e * 16 * EXS}")
            for dt in range(2):
                for e in range(2):
                    tk = a(f"ds_read_b64_tr_b16 {vr(fb + 4 + 4 * dt + 2 * e, 2)}, v{vEXB} "
                           f"offset:{o + e * 16 * EXS + 32 * dt}")
            return tk

        kt = [kv_reads(z) for z in range(4)]
        a(f"s_cmp_lg_u32 s{sWV}, 0")
        a("s_cbranch_scc1 L_noflag")
        a(f"s_or_b32 s7, s{sNON + 1}, s{sPAT}")
        a(f"v_mov_b32 v{vNON + 1}, s7")
        a(f"s_lshl_b32 s{sA}, s{sG}, 4")
        a(f"s_add_u32 s{sA}, s{sA}, s{sJ}")
        a(f"s_lshl_b32 s{sA}, s{sA}, 3")
        a(f"s_add_u32 s{sA}, s{sA}, {WS_RDY}")
        a("s_mov_b64 exec, 1")
        a.raw(f"    buffer_store_dwordx2 {vr(vNON, 2)}, off, {srd(SWS)}, s{sA} sc1")
        a("s_mov_b64 exec, -1")
        a("s_nop 1")
        a.label("L_noflag")
        a(f"v_bfe_u32 v{t0}, v0, 4, 1")
        a(f"v_lshlrev_b32 v{t0}, 9, v{t0}")
        a(f"v_bfe_u32 v{t1}, v0, 2, 2")
        a(f"v_lshl_add_u32 v{t0}, v{t1}, 7, v{t0}")
        a(f"v_lshrrev_b32 v{t1}, 5, v0")
        a(f"v_lshl_add_u32 v{t0}, v{t1}, 6, v{t0}")
        a(f"v_and_b32 v{t1}, 3, v0")
        a(f"v_lshl_add_u32 v{t0}, v{t1}, 4, v{t0}")
        a("s_mov_b32 s7, 0xffffff00")
        for z in range(4):
            a.wait(kt[z])
            fb = FB + 12 * z
            for dt in range(2):
                c = vr(KA + 4 * dt, 4) if z else "0"
                a(f"v_mfma_f32_16x16x32_bf16 {vr(KA + 4 * dt, 4)}, {vr(fb, 4)}, {vr(fb + 4 + 4 * dt, 4)}, {c}")
        QB = WB + 8

        def q_reads(n):
            fb = QB + 4 * (n % 6)
            a(f"ds_read_b64_tr_b16 {vr(fb, 2)}, v{vWQ} offset:{1024 * n}")
            return a(f"ds_read_b64_tr_b16 {vr(fb + 2, 2)}, v{vWQ} offset:{1024 * n + 256}")

        qt = [q_reads(n) for n in range(4)]
        for dt in range(2):
            for k in range(4):
                a(f"v_and_or_b32 v{KA + 4 * dt + k}, v{KA + 4 * dt + k}, s7, v{vTG[k]}")
            a(f"buffer_store_dwordx4 {vr(KA + 4 * dt, 4)}, v{t0}, {srd(SWS)}, s{sKVO} offen"
              f"{' offset:1024' if dt else ''} sc1")
        self.stamp("kvst")
        if self.upto <= 1:
            return
        csQ = (ssq0, ssq1)
        a(f"v_mov_b32 v{csQ[0]}, 0")
        a(f"v_mov_b32 v{csQ[1]}, 0")
        vKG, KX = vXE, XF
        a(f"v_lshrrev_b32 v{vKG}, 3, v0")
        a(f"v_lshlrev_b32 v{vKG}, 13, v{vKG}")
        a(f"v_and_b32 v{t1}, 7, v0")
        a(f"v_lshl_add_u32 v{vKG}, v{t1}, 4, v{vKG}")
        a(f"s_lshl_b32 s{sC}, s{sJ}, 6")
        a(f"s_add_u32 s{sC}, s{sC}, s{sWV}")
        a(f"s_lshl_b32 s{sC}, s{sC}, 11")
        a(f"s_bfe_u32 s7, s{sG}, 0x10002")
        a("s_lshl_b32 s7, s7, 10")
        a(f"s_add_u32 s{sC}, s{sC}, s7")
        a(f"s_lshr_b32 s7, s{sG}, 3")
        a("s_lshl_b32 s7, s7, 9")
        a(f"s_add_u32 s{sC}, s{sC}, s7")
        a(f"s_and_b32 s7, s{sG}, 3")
        a("s_lshl_b32 s7, s7, 7")
        a(f"s_add_u32 s{sC}, s{sC}, s7")
        a(f"s_add_u32 s{sD}, s{sC}, 0x10000")
        kx_ld = [f"buffer_load_dwordx4 {vr(KX, 4)}, v{vKG}, {srd(SWS)}, s{sC} offen sc1",
                 f"buffer_load_dwordx4 {vr(KX + 4, 4)}, v{vKG}, {srd(SWS)}, s{sD} offen sc1"]
        bg = []
        bg2 = []
        if opt["w2a"]:
            a.wait(tk_w2)
            bg = self.w2_consume(0)
            bg2 = self.w2_issue(1)
        for n in range(28):
            a.wait(qt[n])
            c = vr(AQ, 16) if n else "0"
            fb = QB + 4 * (n % 6)
            a(f"v_mfma_f32_32x32x16_bf16 {vr(AQ, 16)}, {vr(fb, 4)}, {vr(XF + 4 * n, 4)}, {c}")
            for d in range(4):
                a(f"v_dot2_f32_bf16 v{csQ[d & 1]}, v{fb + d}, s{sONE}, v{csQ[d & 1]}")
            if n + 4 < 28:
                qt.append(q_reads(n + 4))
            if n < 10 and bg:
                tkc = self.emit(bg[3 * n:3 * n + 3]) or tkc
            if n == opt["nb"]:
                tk_kx = self.emit(kx_ld)
            if n >= 14 and bg2:
                if n == 14:
                    a.wait(tkc)
                tk_w2 = self.emit(bg2.pop(0))
        a(f"v_add_f32 v{csQ[0]}, v{csQ[0]}, v{csQ[1]}")
        a.wait_lg()
        a("s_barrier")
        self.stamp("bq")
        a(f"v_mfma_f32_32x32x2_f32 {vr(AQ, 16)}, v{csQ[0]}, v{vNM}, {vr(AQ, 16)}")
        a(f"s_mov_b32 s{sA}, 0x0c0c0400")
        a(f"s_mov_b32 s{sB}, 0x04000c0c")
        a(f"v_and_b32 v{vKG + 1}, 3, v0")
        a(f"v_lshlrev_b32 v{vKG + 1}, 4, v{vKG + 1}")
        a(f"v_bfe_u32 v{t1}, v0, 2, 1")
        a(f"v_lshl_add_u32 v{vKG + 1}, v{t1}, 3, v{vKG + 1}")
        a(f"v_lshrrev_b32 v{t1}, 5, v0")
        a(f"v_lshl_add_u32 v{vKG + 1}, v{t1}, 2, v{vKG + 1}")
        a.wait(tk_kx)
        self.stamp("kxarr")
        T2 = XF + 8
        chk = []
        for c in range(2):
            x = KX + 4 * c
            chk += [f"v_perm_b32 v{T2 + 2 * c}, v{x + 1}, v{x}, s{sA}",
                    f"v_perm_b32 v{T2 + 2 * c + 1}, v{x + 3}, v{x + 2}, s{sB}"]
        chk += [f"v_or_b32 v{T2}, v{T2}, v{T2 + 1}",
                f"v_or_b32 v{T2 + 2}, v{T2 + 2}, v{T2 + 3}",
                f"v_xor_b32 v{T2}, s{sNON}, v{T2}",
                f"v_xor_b32 v{T2 + 2}, s{sNON}, v{T2 + 2}",
                f"v_or_b32 v{T2}, v{T2}, v{T2 + 2}",
                f"v_cmp_ne_u32 vcc, 0, v{T2}"]
        self.spin_ool("kx", kx_ld, chk)
        for d in range(4):
            a(f"v_add_f32 v{KX + d}, v{KX + d}, v{KX + 4 + d}")
        for d in range(4):
            a(f"v_add_f32_dpp v{KX + d}, v{KX + d}, v{KX + d} row_ror:8 row_mask:0xf bank_mask:0xf")
        a(f"v_permlane16_swap_b32 v{KX}, v{KX + 1}")
        a(f"v_permlane16_swap_b32 v{KX + 2}, v{KX + 3}")
        a(f"v_add_f32 v{KX}, v{KX}, v{KX + 1}")
        a(f"v_add_f32 v{KX + 2}, v{KX + 2}, v{KX + 3}")
        a(f"v_permlane32_swap_b32 v{KX}, v{KX + 2}")
        a(f"v_add_f32 v{KX}, v{KX}, v{KX + 2}")
        a(f"v_mov_b32 v{KX + 1}, v{KX}")
        a(f"v_permlane16_swap_b32 v{KX}, v{KX + 1}")
        a(f"v_cvt_pk_bf16_f32 v{KX}, v{KX}, v{KX + 1}")
        a("s_mov_b32 exec_lo, 0xff")
        a("s_mov_b32 exec_hi, 0xff")
        a(f"buffer_store_dword v{KX}, v{vKG + 1}, {srd(SWS)}, s{sKVR} offen sc1")
        a("s_mov_b64 exec, -1")
        self.stamp("kvr")
        tk_rdy = a(rdy_ld)
        a(f"v_and_b32 v{t1}, 15, v0")
        a(f"v_mul_u32_u24 v{t1}, 896, v{t1}")
        a(f"v_lshrrev_b32 v{VXR - 1}, 4, v0")
        a(f"v_lshl_add_u32 v{VXR - 1}, v{VXR - 1}, 3, v{t1}")
        a(f"s_lshl_b32 s{sA}, s{sG}, 1")
        a(f"s_add_u32 s{sA}, s{sA}, s{sTH}")
        a(f"s_lshl_b32 s{sA}, s{sA}, 2")
        a(f"s_add_u32 s{sA}, s{sA}, s{sWV}")
        a(f"s_mul_i32 s{sA}, s{sA}, {16 * 896}")
        a(f"s_lshl_b32 s7, s{sT1}, 7")
        a(f"s_add_u32 s{sA}, s{sA}, s7")
        for t in range(4):
            off = f" offset:{32 * t}" if t else ""
            self.tk_xr = a(f"buffer_load_dwordx2 {vr(VXR + 2 * t, 2)}, v{VXR - 1}, {srd(SX)}, s{sA} offen{off}")
        KB = WB
        P = WB + 16
        for i in range(0, 16, 2):
            a(f"v_cvt_pk_bf16_f32 v{KB + i // 2}, v{AQ + i}, v{AQ + i + 1}")
        a(f"v_mfma_f32_32x32x16_bf16 {vr(P, 16)}, {vr(WPH, 4)}, {vr(KB, 4)}, 0")
        a(f"v_mfma_f32_32x32x16_bf16 {vr(P, 16)}, {vr(WPH + 4, 4)}, {vr(KB + 4, 4)}, {vr(P, 16)}")
        a(f"v_mul_u32_u24 v{t0}, 37, v0")
        a(f"v_lshrrev_b32 v{t0}, 9, v{t0}")
        a(f"v_mul_u32_u24 v{t1}, 14, v{t0}")
        a(f"v_sub_u32 v{t1}, v0, v{t1}")
        a("s_movk_i32 s7, 3584")
        a(f"v_mul_u32_u24 v{t0}, s7, v{t0}")
        a(f"v_lshl_add_u32 v{vW1G}, v{t1}, 4, v{t0}")
        a(f"s_mul_i32 s{sWL}, s{sWV}, 896")
        a(f"s_mul_i32 s{sBLK}, s{sWV}, {4 * 3584}")
        a(f"s_mul_i32 s7, s{sJ}, 224")
        a(f"s_add_u32 s{sBLK}, s{sBLK}, s7")
        a(f"v_bfe_u32 v{t0}, v0, 1, 2")
        a(f"v_bfe_u32 v{t1}, v0, 4, 2")
        a(f"v_xor_b32 v{t0}, v{t0}, v{t1}")
        a(f"v_and_b32 v{t1}, 1, v0")
        a(f"v_lshl_add_u32 v{t0}, v{t0}, 1, v{t1}")
        a(f"v_lshrrev_b32 v{t1}, 3, v0")
        a(f"v_mul_u32_u24 v{t1}, 896, v{t1}")
        a(f"v_lshl_add_u32 v{vWOG}, v{t0}, 4, v{t1}")
        self.w1_done = opt.get("w1a", 18)
        self.bg_start(self.w1_issue(0, self.w1_done), "w1", 8, 2)
        vQ = [196 + i for i in range(4)]
        q = 200
        a(f"v_lshrrev_b32 v{t0}, 5, v0")
        a(f"s_mul_i32 s7, s{sJ}, 7")
        a(f"v_add_u32 v{t0}, s7, v{t0}")
        a(f"v_and_b32 v{t1}, 15, v0")
        a(f"v_lshlrev_b32 v{t1}, 4, v{t1}")
        a(f"v_bfe_u32 v{q}, v0, 4, 1")
        a("s_movk_i32 s7, 14336")
        a(f"v_mad_u32_u24 v{t1}, v{q}, s7, v{t1}")
        for i in range(4):
            a(f"v_add_u32 v{q}, {2 * i}, v{t0}")
            a(f"v_lshrrev_b32 v{vQ[i]}, 3, v{q}")
            a(f"v_lshl_add_u32 v{vQ[i]}, v{vQ[i]}, 10, v{t1}")
            a(f"v_and_b32 v{q + 1}, 3, v{q}")
            a(f"v_lshl_add_u32 v{vQ[i]}, v{q + 1}, 8, v{vQ[i]}")
            a(f"v_bfe_u32 v{q + 1}, v{q}, 2, 1")
            a(f"v_lshl_add_u32 v{vQ[i]}, v{q + 1}, 3, v{vQ[i]}")
        PQ = AQ
        EP, EN = AK, AV
        self.feature_map(P, EP, EN, vSC, vPAD, TS, PQ, PQ + 8)
        self.tk_w1 = self.bg_finish()
        self.stamp("fq")

        def rdy_chk(mask, nhi):
            return [f"v_and_b32 v{t0}, -16, v{vNON + 1}",
                    f"v_xor_b32 v{t0}, s{sNON + 1}, v{t0}",
                    f"v_xor_b32 v{t1}, s{sNON}, v{vNON}",
                    f"v_or_b32 v{t0}, v{t0}, v{t1}",
                    f"v_cmp_ne_u32 vcc, 0, v{t0}",
                    f"s_and_b32 vcc_lo, vcc_lo, {mask}",
                    "s_mov_b32 vcc_hi, 0"]

        a.wait(tk_rdy)
        self.spin_ool("rdy", [rdy_ld], rdy_chk("-1", 0))
        KF = XF + 16
        a(f"s_lshl_b32 s{sD}, s{sJ}, 12")
        a(f"s_add_u32 s{sD}, s{sD}, {WS_KVR}")
        kfl = [f"buffer_load_dwordx4 {vr(KF + 4 * u, 4)}, v{vL16}, {srd(SWS)}, s{sD} offen"
               f"{' offset:%d' % (1024 * u) if u else ''} sc1" for u in range(4)]
        tk_kf = self.emit(kfl)
        a(f"v_and_b32 v{t0}, 15, v{vNON + 1}")
        a(f"v_cmp_eq_u32 vcc, s{sPAT}, v{t0}")
        a("s_and_b32 s7, vcc_lo, 0xffff")
        a("s_cmp_eq_u32 s7, 0xffff")
        a(f"s_cselect_b32 s{sLOC}, {0 if opt['force_slow'] else 1}, 0")
        a(f"s_cmp_eq_u32 s{sLOC}, 0")
        a.branch_nf("s_cbranch_scc1 L_split")
        a.label_nf("L_splitb")
        b = Asm()
        b(f"s_add_u32 s{sGB}, s{sGB}, {BSET}")
        b(f"s_add_u32 s{sA}, s{sXW}, {BSET}")
        for r in range(4):
            b(f"v_mov_b32 v{vFF + r}, -1")
        for q_ in range(4):
            b(f"buffer_store_dwordx4 {vr(vFF, 4)}, v{vL16}, {srd(SWS)}, s{sA} offen"
              f"{' offset:%d' % (1024 * q_) if q_ else ''} sc1")
        b("s_waitcnt vmcnt(0)")
        b("s_barrier")
        b(f"s_cmp_lg_u32 s{sWV}, 0")
        b("s_cbranch_scc1 L_splitw")
        b(f"v_mov_b32 v{vNON}, s{sNON}")
        b(f"v_mov_b32 v{vNON + 1}, s{sNON + 1}")
        b(f"s_lshl_b32 s{sA}, s{sG}, 4")
        b(f"s_add_u32 s{sA}, s{sA}, s{sJ}")
        b(f"s_lshl_b32 s{sA}, s{sA}, 3")
        b(f"s_add_u32 s{sA}, s{sA}, {WS_RDY}")
        b("s_mov_b64 exec, 1")
        b(f"buffer_store_dwordx2 {vr(vNON, 2)}, off, {srd(SWS)}, s{sA} offset:2048 sc1")
        b("s_mov_b64 exec, -1")
        b("s_waitcnt vmcnt(0)")
        b.label("L_splitw")
        b(f"s_mov_b32 s{sCNT}, {SPIN}")
        b.label("L_splitl")
        b(f"buffer_load_dwordx2 {vr(vNON, 2)}, v{vRG}, {srd(SWS)}, 0 offen offset:2048 sc1")
        b("s_waitcnt vmcnt(0)")
        for t in rdy_chk("0xffff", 0):
            b(t)
        b(f"s_sub_u32 s{sCNT}, s{sCNT}, 1")
        b("s_cbranch_scc1 L_splitx")
        b("s_cbranch_vccnz L_splitl")
        b.label("L_splitx")
        self.ool += ["L_split:", "    s_nop 15", "    s_nop 7"] + b.finalize().rstrip("\n").split("\n")
        self.ool += ["    s_nop 7", "    s_branch L_splitb"]
        if opt["w2a"]:
            a.wait(tk_w2)
            self.emit(self.w2_consume(1))
        a.wait_lg()
        wol = self.wo_issue()
        nw = opt.get("wo0", 4)
        self.emit(sum(wol[:nw], []))
        a(f"s_mul_i32 s{sC}, s{sWV}, {2 * 14336}")
        a(f"s_add_u32 s{sC}, s{sC}, s{sGB}")
        a.wait(tk_kf)
        self.stamp("kvarr")
        kregs = [KF + k for k in range(16)]
        self.sent_check(kregs, t0)
        self.verify(t0, kfl, kregs)
        self.stamp("kvok")
        OA = P
        self.bg_start(wol[nw:], "wo", 3, 0)
        for u in range(4):
            c = vr(OA, 16) if u else "0"
            a(f"v_mfma_f32_32x32x16_bf16 {vr(OA, 16)}, {vr(KF + 4 * u, 4)}, {vr(PQ + 4 * u, 4)}, {c}")
        self.bg_pause()
        vD = 92
        a(f"v_mov_b32 v{t0}, v{OA + 12}")
        a(f"v_mov_b32 v{vD}, v{OA + 12}")
        a(f"v_permlane32_swap_b32 v{t0}, v{vD}")
        a(f"v_add_f32 v{vD}, 0x358637bd, v{vD}")
        a(f"v_rcp_f32 v{vD}, v{vD}")
        for i in range(0, 14, 2):
            a(f"v_pk_mul_f32 {vr(OA + i, 2)}, {vr(OA + i, 2)}, {vr(vD, 2)} op_sel_hi:[1,0]")
        a(f"v_pk_mul_f32 {vr(OA + 14, 2)}, {vr(OA + 14, 2)}, {vr(vD, 2)} op_sel_hi:[1,0]")
        OB = AK
        for i in range(0, 16, 2):
            a(f"v_cvt_pk_bf16_f32 v{OB + i // 2}, v{OA + i}, v{OA + i + 1}")
        st = []
        for i in range(4):
            if i == 3:
                st.append("s_mov_b32 exec_hi, 0")
            st.append(f"buffer_store_dwordx2 {vr(OB + 2 * i, 2)}, v{vQ[i]}, {srd(SWS)}, s{sC} offen @")
        st.append("s_mov_b32 exec_hi, -1")
        self.dual(st)
        self.stamp("ost")
        self.tk_wo = self.bg_finish()

    def stage2(self):
        a = self.a
        t0, t1 = 30, 31
        OF, ACC = 128, 200
        vWOA = [216, 217, 218, 219]

        def frag(s, t):
            n = 4 * s + t
            return ("a", 112 + 4 * n) if n < 36 else ("v", 32 + 4 * (n - 36))

        def fr(s, t, o, k):
            c, r = frag(s, t)
            return f"{c}[{r + o}:{r + o + k - 1}]"

        vB = 6
        a(f"s_and_b32 s{sT3}, s{sJ}, 1")
        a(f"v_lshrrev_b32 v{t0}, 3, v0")
        a(f"v_add_u32 v{t0}, s{sT3}, v{t0}")
        a(f"v_cmp_eq_u32 vcc, 7, v{t0}")
        a(f"v_cndmask_b32 v{t0}, v{t0}, 0, vcc")
        a(f"v_and_b32 v{t1}, 7, v0")
        a(f"v_lshlrev_b32 v{t1}, 2, v{t1}")
        a(f"v_lshl_add_u32 v{t0}, v{t0}, 5, v{t1}")
        a(f"s_mul_i32 s{sA}, s{sJ}, 224")
        self.tk_b1 = a(f"buffer_load_dword v{vB}, v{t0}, {srd(SB1)}, s{sA} offen")
        a(f"s_cmp_ge_u32 s{sJ}, 14")
        a("s_cbranch_scc1 L_skip2")
        a(f"v_lshrrev_b32 v{t0}, 2, v0")
        a(f"v_lshlrev_b32 v{t0}, 7, v{t0}")
        a(f"v_and_b32 v{t1}, 3, v0")
        a(f"v_lshl_add_u32 v{t0}, v{t1}, 3, v{t0}")
        a(f"v_bfe_u32 v{t1}, v0, 3, 2")
        for t in range(4):
            a(f"v_xor_b32 v{vWOA[t]}, {t}, v{t1}")
            a(f"v_lshl_add_u32 v{vWOA[t]}, v{vWOA[t]}, 5, v{t0}")
        a(f"s_lshl_b32 s{sC}, s{sTH}, 2")
        a(f"s_add_u32 s{sC}, s{sC}, s{sWV}")
        a(f"s_mul_i32 s{sC}, s{sC}, 14336")
        a(f"s_add_u32 s{sC}, s{sC}, s{sGB}")
        a(f"s_add_u32 s{sD}, s{sC}, 4096")
        a(f"s_add_u32 s{sE}, s{sC}, 8192")
        a(f"s_add_u32 s{sF}, s{sC}, 12288")
        a.wait(self.tk_wo)
        a("s_barrier")
        self.stamp("bwo")
        ol = []
        for s in range(14):
            off = f" offset:{1024 * (s & 3)}" if s & 3 else ""
            ol.append(f"buffer_load_dwordx4 {vr(OF + 4 * s, 4)}, v{vL16}, {srd(SWS)}, s{(sC, sD, sE, sF)[s >> 2]} "
                      f"offen{off} sc1")
        rd = []
        for s in range(14):
            for t in range(4):
                for hf in range(2):
                    rd.append(f"ds_read_b64_tr_b16 {fr(s, t, 2 * hf, 2)}, v{vWOA[t]} offset:{4096 * s + 2048 * hf}")
        n0 = self.opt["o_delay"]
        self.emit(rd[:n0])
        k = n0
        for s in range(14):
            tk_o = a(ol[s])
            self.emit(rd[k:k + 4])
            k += 4
        self.emit(rd[k:])
        a.wait(self.tk_xr)
        for t in range(4):
            for e in range(2):
                a(f"v_lshlrev_b32 v{ACC + 4 * t + 2 * e}, 16, v{VXR + 2 * t + e}")
                a(f"v_and_b32 v{ACC + 4 * t + 2 * e + 1}, 0xffff0000, v{VXR + 2 * t + e}")
        a.wait(tk_o)
        self.stamp("oarr")
        regs = [OF + 4 * s + d for s in range(14) for d in (0, 2)]
        self.sent_check(regs, t0)
        self.verify(t0, ol, regs)
        a.wait_lg()
        self.stamp("ook")
        w1l = self.w1_issue(self.w1_done, 28)
        for s in range(14):
            for t in range(4):
                a(f"v_mfma_f32_16x16x32_bf16 {vr(ACC + 4 * t, 4)}, {fr(s, t, 0, 4)}, {vr(OF + 4 * s, 4)}, "
                  f"{vr(ACC + 4 * t, 4)}")
            if w1l:
                self.tk_w1 = self.emit(w1l.pop(0))
        assert not w1l
        HP = 220
        sm, sq = 228, 229
        a(f"s_lshl_b32 s7, s{sT1}, 11")
        a(f"s_add_u32 s{sC}, s{sC}, s7")
        a(f"s_add_u32 s{sC}, s{sC}, {GB_HB}")
        for i in range(8):
            a(f"v_cvt_pk_bf16_f32 v{HP + i}, v{ACC + 2 * i}, v{ACC + 2 * i + 1}")
        self.dual([f"buffer_store_dwordx4 {vr(HP, 4)}, v{vL16}, {srd(SWS)}, s{sC} offen @",
                   f"buffer_store_dwordx4 {vr(HP + 4, 4)}, v{vL16}, {srd(SWS)}, s{sC} offen offset:1024 @"])
        for i in range(8):
            a(f"v_dot2_f32_bf16 v{sm}, v{HP + i}, s{sONE}, {'v%d' % sm if i else 0}")
            a(f"v_dot2_f32_bf16 v{sq}, v{HP + i}, v{HP + i}, {'v%d' % sq if i else 0}")
        a(f"v_and_b32 v{t0}, 15, v0")
        a(f"v_lshlrev_b32 v{t0}, 6, v{t0}")
        a(f"v_lshrrev_b32 v{t1}, 5, v0")
        a(f"v_lshl_add_u32 v{t0}, v{t1}, 2, v{t0}")
        a(f"v_permlane32_swap_b32 v{sm}, v{sq}")
        a(f"s_lshl_b32 s{sD}, s{sTH}, 2")
        a(f"s_add_u32 s{sD}, s{sD}, s{sWV}")
        a(f"s_lshl_b32 s{sD}, s{sD}, 10")
        a(f"v_add_f32 v{sm}, v{sm}, v{sq}")
        a(f"s_lshl_b32 s7, s{sT1}, 3")
        a(f"s_add_u32 s{sD}, s{sD}, s7")
        a(f"v_mov_b32 v{sq}, v{sm}")
        a(f"s_add_u32 s{sD}, s{sD}, s{sGB}")
        a(f"s_add_u32 s{sD}, s{sD}, {GB_ST}")
        a(f"v_permlane16_swap_b32 v{sm}, v{sq}")
        a(f"v_add_f32 v{sm}, v{sm}, v{sq}")
        self.dual([f"buffer_store_dword v{sm}, v{t0}, {srd(SWS)}, s{sD} offen @"])
        self.stamp("hst")
        a("s_branch L_join2")
        a.label("L_skip2")
        a("s_barrier")
        for t in sum(self.w1_issue(self.w1_done, 28), []):
            a.raw("    " + t)
        a.raw("    s_waitcnt vmcnt(0)")
        a.label("L_join2")

    def stage3(self):
        a = self.a
        t0, t1 = 30, 31
        vB = 6
        vA = (7, 8)
        vA6 = (9, 10)
        vCB = 11
        vST = 12
        vH1 = 13
        ACC, BI, HF, TM = 32, 88, 128, 240
        ONES = 16
        RS, NM, SD, MN = (20, 21), (22, 23), (24, 25), (26, 27)
        RING = 168
        NR = 20

        def ring(n):
            return RING + 4 * (n % NR)

        def rd_frag(n, u, s):
            v = (vA6 if u == 6 else vA)[s >= 7]
            o = (s % 7) * 7168 + (0 if u == 6 else 32 * u)
            a(f"ds_read_b64_tr_b16 {ar(ring(n), 2)}, v{v} offset:{o}")
            return a(f"ds_read_b64_tr_b16 {ar(ring(n) + 2, 2)}, v{v} offset:{o + 3584}")

        def rd_lines(n, u, s):
            v = (vA6 if u == 6 else vA)[s >= 7]
            o = (s % 7) * 7168 + (0 if u == 6 else 32 * u)
            return [f"ds_read_b64_tr_b16 {ar(ring(n), 2)}, v{v} offset:{o}",
                    f"ds_read_b64_tr_b16 {ar(ring(n) + 2, 2)}, v{v} offset:{o + 3584}"]

        a(f"v_lshrrev_b32 v{t0}, 2, v0")
        a(f"v_mul_u32_u24 v{t0}, 224, v{t0}")
        a(f"v_and_b32 v{t1}, 3, v0")
        a(f"v_lshl_add_u32 v{t0}, v{t1}, 3, v{t0}")
        a(f"s_lshl_b32 s7, s{sT3}, 5")
        a(f"s_add_u32 s7, s7, {R1}")
        a(f"v_add_u32 v{vA[0]}, s7, v{t0}")
        a(f"v_add_u32 v{vA[1]}, {7 * 7168}, v{vA[0]}")
        a(f"s_cmp_eq_u32 s{sT3}, 0")
        a("s_cselect_b32 s7, 192, 0")
        a(f"s_add_u32 s7, s7, {R1}")
        a(f"v_add_u32 v{vA6[0]}, s7, v{t0}")
        a(f"v_add_u32 v{vA6[1]}, {7 * 7168}, v{vA6[0]}")
        a(f"v_lshrrev_b32 v{vCB}, 4, v0")
        a(f"v_lshlrev_b32 v{vCB}, 4, v{vCB}")
        a(f"v_and_b32 v{t1}, 15, v0")
        a(f"v_lshl_add_u32 v{vST}, v{t1}, 6, v{vCB}")
        a(f"v_add_u32 v{vCB}, {C1}, v{vCB}")
        for d in range(4):
            a(f"v_mov_b32 v{ONES + d}, s{sONE}")
        a.wait(self.tk_b1)
        a(f"v_lshlrev_b32 v{TM}, 16, v{vB}")
        a(f"v_and_b32 v{TM + 1}, 0xffff0000, v{vB}")
        a(f"v_lshlrev_b32 v{t0}, 3, v0")
        a(f"v_add_u32 v{t0}, {B1}, v{t0}")
        a("s_mov_b32 exec_hi, 0x00ffffff")
        a(f"ds_write_b64 v{t0}, {vr(TM, 2)}")
        a("s_mov_b32 exec_hi, -1")
        a.wait(self.tk_w1)
        a.wait_lg()
        a("s_barrier")
        self.stamp("bw1")
        w2l = self.w2_issue(2)
        vC0, vC1 = 14, 15
        a(f"s_lshl_b32 s7, s{sWV}, 5")
        a(f"v_add_u32 v{vC0}, s7, v{vA[0]}")
        a(f"v_add_u32 v{vC1}, 128, v{vC0}")
        a(f"s_cmp_ge_u32 s{sWV}, 2")
        a("s_cselect_b64 vcc, -1, 0")
        a(f"v_cndmask_b32 v{vC1}, v{vC1}, v{vA6[0]}, vcc")
        CS = TM
        for half in range(2):
            tk = []
            for s in range(7):
                for x, v in enumerate((vC0, vC1)):
                    r = RING + 4 * (2 * s + x)
                    a(f"ds_read_b64_tr_b16 {ar(r, 2)}, v{v} offset:{s * 7168}")
                    tk.append(a(f"ds_read_b64_tr_b16 {ar(r + 2, 2)}, v{v} offset:{s * 7168 + 3584}"))
                if half == 0:
                    self.tk_w2 = self.emit(w2l.pop(0) + w2l.pop(0))
            if half == 0:
                a(f"v_add_u32 v{vC0}, {7 * 7168}, v{vC0}")
                a(f"v_add_u32 v{vC1}, {7 * 7168}, v{vC1}")
            for s in range(7):
                for x in range(2):
                    a.wait(tk[2 * s + x])
                    c = vr(CS + 4 * x, 4) if (half or s) else "0"
                    a(f"v_mfma_f32_16x16x32_bf16 {vr(CS + 4 * x, 4)}, {ar(RING + 4 * (2 * s + x), 4)}, "
                      f"{vr(ONES, 4)}, {c}")
        assert not w2l
        a(f"s_lshl_b32 s7, s{sWV}, 6")
        a(f"v_add_u32 v{t0}, s7, v{vCB}")
        a(f"s_add_u32 s7, s{sWV}, 4")
        a("s_min_u32 s7, s7, 6")
        a("s_lshl_b32 s7, s7, 6")
        a(f"v_add_u32 v{t1}, s7, v{vCB}")
        a("s_mov_b32 exec_lo, 0x00010001")
        a("s_mov_b32 exec_hi, 0x00010001")
        a(f"ds_write_b128 v{t0}, {vr(CS, 4)}")
        a(f"ds_write_b128 v{t1}, {vr(CS + 4, 4)}")
        a("s_mov_b64 exec, -1")
        self.stamp("c1")
        sH = sT0
        a(f"s_mul_i32 s{sH}, s{sWV}, {2 * 14336}")
        a(f"s_add_u32 s{sH}, s{sH}, s{sGB}")
        a(f"s_add_u32 s{sH}, s{sH}, {GB_HB}")
        a(f"s_lshl_b32 s{sT2}, s{sWV}, 11")
        a(f"s_add_u32 s{sT2}, s{sT2}, s{sGB}")
        a(f"s_add_u32 s{sT2}, s{sT2}, {GB_ST}")
        STR = 248
        GR = [(0, 4), (4, 8), (8, 11), (11, 14)]

        def hreg(tt, s):
            return HF + 8 * s + 4 * tt

        def h_lines(lo, hi_):
            o = []
            for s in range(lo, hi_):
                for tt in range(2):
                    o.append(f"s_add_u32 s{sA}, s{sH}, {(14 * tt + s) * 1024}")
                    o.append(f"buffer_load_dwordx4 {vr(hreg(tt, s), 4)}, v{vL16}, {srd(SWS)}, s{sA} offen sc1")
            return o

        st_l = [f"buffer_load_dwordx4 {vr(STR, 4)}, v{vST}, {srd(SWS)}, s{sT2} offen sc1",
                f"buffer_load_dwordx4 {vr(STR + 4, 4)}, v{vST}, {srd(SWS)}, s{sT2} offen offset:1024 sc1"]
        gl = [h_lines(*g) for g in GR]
        gl[0] = gl[0] + st_l
        gtok = []
        nfr = 0
        pre = [(u, s) for s in range(5) for u in range(4)]
        ftok = {}
        for gi in range(4):
            lines = gl[gi]
            while lines:
                n = 2 if lines[0].startswith("s_add") else 1
                tk = self.emit(lines[:n])
                lines = lines[n:]
                if pre:
                    u, s = pre.pop(0)
                    ftok[(u, s)] = rd_frag(nfr, u, s)
                    nfr += 1
            gtok.append(tk)
        assert not pre
        a.wait_lg()
        a("s_barrier")
        self.stamp("bc1")
        a(f"v_cmp_lt_u32 s[{sE}:{sF}], 47, v0")

        def gregs(gi):
            r = [hreg(tt, s) + d for s in range(*GR[gi]) for tt in range(2) for d in (0, 2)]
            return r

        def fix_lines():
            return [f"v_cndmask_b32 v{STR + 2}, v{STR + 2}, 0, s[{sE}:{sF}]",
                    f"v_cndmask_b32 v{STR + 3}, v{STR + 3}, 0, s[{sE}:{sF}]",
                    f"v_cndmask_b32 v{STR + 6}, v{STR + 6}, 0, s[{sE}:{sF}]",
                    f"v_cndmask_b32 v{STR + 7}, v{STR + 7}, 0, s[{sE}:{sF}]"]

        def check(gi):
            a.wait(gtok[gi])
            regs = gregs(gi)
            post = []
            if gi == 0:
                self.stamp("harr")
                post = fix_lines()
                self.emit(post)
                regs = regs + list(range(STR, STR + 8))
            self.sent_check(regs, t0)
            self.verify(t0, sum(gl[gi:], []) if gi else gl[0] + sum(gl[1:], []), regs, post)

        check(0)
        self.stamp("hok")
        bg = []
        S0, Q0, S1, Q1 = STR, STR + 1, STR + 4, STR + 5
        bg += [f"v_add_f32 v{S0}, v{STR}, v{STR + 2}", f"v_add_f32 v{Q0}, v{STR + 1}, v{STR + 3}",
               f"v_add_f32 v{S1}, v{STR + 4}, v{STR + 6}", f"v_add_f32 v{Q1}, v{STR + 5}, v{STR + 7}",
               f"v_permlane32_swap_b32 v{S0}, v{Q0}", f"v_permlane32_swap_b32 v{S1}, v{Q1}",
               f"v_add_f32 v{S0}, v{S0}, v{Q0}", f"v_add_f32 v{S1}, v{S1}, v{Q1}", "s_nop 0",
               f"v_permlane16_swap_b32 v{S0}, v{S1}",
               f"v_add_f32 v{S0}, v{S0}, v{S1}",
               f"v_mul_f32 v{S0}, 0x3b124925, v{S0}",
               f"v_mov_b32 v{Q0}, v{S0}", "s_nop 0",
               f"v_permlane32_swap_b32 v{S0}, v{Q0}",
               f"v_fma_f32 v{Q0}, -v{S0}, v{S0}, v{Q0}",
               f"v_add_f32 v{Q0}, 0x3727c5ac, v{Q0}",
               f"v_rsq_f32 v{RS[0]}, v{Q0}",
               f"v_sub_f32 v{MN[0]}, 0, v{S0}",
               f"v_mul_f32 v{NM[0]}, v{MN[0]}, v{RS[0]}",
               f"v_mul_f32 v{SD[0]}, v{Q0}, v{RS[0]}"]
        for P_ in (RS, NM, SD, MN):
            bg.append(f"v_mov_b32 v{P_[1]}, v{P_[0]}")
        for P_ in (RS, NM, SD, MN):
            bg.append(f"v_permlane16_swap_b32 v{P_[0]}, v{P_[1]}")
        CT, BT = TM, TM + 4
        for u in range(7):
            bg.append(("rd", [f"ds_read_b128 {vr(CT, 4)}, v{vCB} offset:{64 * u}",
                              f"ds_read_b128 {vr(BT, 4)}, v{vCB} offset:{B1 - C1 + 64 * u}"]))
            bg += ["s_nop 0"] * 0
            bg.append(("wait",))
            for tt in range(2):
                for e in range(4):
                    if u < 4:
                        bg.append(f"v_fma_f32 v{BI + 8 * u + 4 * tt + e}, v{CT + e}, v{NM[tt]}, v{BT + e}")
                    else:
                        d = ACC + 8 * u + 4 * tt + e
                        bg.append(f"v_mul_f32 v{d}, v{BT + e}, v{SD[tt]}")
                        bg.append(f"v_fma_f32 v{d}, v{CT + e}, v{MN[tt]}, v{d}")
        pend = [None]

        def bgl(n):
            k = 0
            while bg and k < n:
                it = bg[0]
                if isinstance(it, tuple):
                    if it[0] == "rd":
                        bg.pop(0)
                        pend[0] = (self.emit(it[1]), 3)
                        k += 2
                        continue
                    if it[0] == "wait":
                        tk, age = pend[0]
                        if age > 0:
                            pend[0] = (tk, age - 1)
                            return
                        a.wait(tk)
                        bg.pop(0)
                        continue
                    if it[0] == "rd1":
                        bg.pop(0)
                        self.tk_c2 = a(it[1])
                        k += 1
                        continue
                    if it[0] == "call":
                        bg.pop(0)
                        it[1]()
                        k += it[2]
                        continue
                a(bg.pop(0))
                k += 1

        seq = [(u, s) for s in range(14) for u in range(4)] + [(u, s) for s in range(14) for u in (4, 5)] + \
              [(6, s) for s in range(14)]
        rq = []
        for n in range(NR, len(seq)):
            rq += [(n, x) for x in range(2)]

        def rd_step(done):
            if rq and rq[0][0] - NR < done:
                n, x = rq.pop(0)
                u, s = seq[n]
                ftok[(u, s)] = a(rd_lines(n, u, s)[x])

        sS = sT2
        a(f"s_mul_i32 s{sS}, s{sWV}, {2 * 57344}")
        a(f"s_add_u32 s{sS}, s{sS}, s{sGB}")
        a(f"s_add_u32 s{sS}, s{sS}, {GB_H1}")
        a(f"s_mul_i32 s7, s{sJ}, 7")
        a("s_add_u32 s7, s7, 1")
        a("s_lshr_b32 s7, s7, 1")
        a("s_lshl_b32 s7, s7, 10")
        a(f"s_add_u32 s{sS}, s{sS}, s7")
        PK = TM

        def epi(u_list):
            o = []
            for tt in range(2):
                for x, u in enumerate(u_list):
                    for e in range(4):
                        d = ACC + 8 * u + 4 * tt + e
                        if u < 4:
                            o.append(f"v_fma_f32 v{d}, v{d}, v{RS[tt]}, v{BI + 8 * u + 4 * tt + e}")
                        else:
                            o.append(f"v_mul_f32 v{d}, v{d}, v{RS[tt]}")
                    for e in range(4):
                        d = ACC + 8 * u + 4 * tt + e
                        o.append(f"v_max_f32 v{d}, 0, v{d}")
                    for e in range(4):
                        d = ACC + 8 * u + 4 * tt + e
                        o.append(f"v_mul_f32 v{d}, v{d}, v{d}")
                    d = ACC + 8 * u + 4 * tt
                    p = PK + 4 * tt + 2 * x
                    o.append(f"v_cvt_pk_bf16_f32 v{p}, v{d}, v{d + 1}")
                    o.append(f"v_cvt_pk_bf16_f32 v{p + 1}, v{d + 2}, v{d + 3}")
                if len(u_list) == 2:
                    so = (u_list[0] // 2) * 1024 + tt * 57344
                    ln = [f"s_add_u32 s{sA}, s{sS}, {so}",
                          f"buffer_store_dwordx4 {vr(PK + 4 * tt, 4)}, v{vL16}, {srd(SWS)}, s{sA} offen @"]
                else:
                    ln = [f"s_add_u32 s{sA}, s{sB}, {tt * 57344}",
                          f"buffer_store_dwordx2 {vr(PK + 4 * tt, 2)}, v{vL16}, {srd(SWS)}, s{sA} offen @"]

                def st(ln=ln, key=u_list[0]):
                    self.tk_h1[key] = self.dual(ln)
                o.append(("call", st, 3))
            return o

        sFL = sT0

        self.tk_h1 = {}

        def flag(p):
            def f():
                a.wait(self.tk_h1[(2, 6)[p]])
                a(f"v_mov_b32 v{t1}, 1")
                self.dual(["s_mov_b64 exec, 1",
                           f"buffer_store_dword v{t1}, off, {srd(SWS)}, s{sFL} offset:{256 * p} @",
                           "s_mov_b64 exec, -1"])
            return f

        self.flag = flag
        self.sFL = sFL
        c2 = self.w2_consume(2)
        bg += c2[:-1] + [("rd1", c2[-1])]
        w3g = self.w2_issue(3)

        def w3_item(g, first):
            def f():
                if first:
                    a.wait(self.tk_c2)
                self.tk_w2 = self.emit(g)
            return ("call", f, 3)

        def mix(main, extra, every):
            o = []
            for i, it in enumerate(main):
                o.append(it)
                if extra and i % every == every - 1:
                    o.append(extra.pop(0))
            return o + extra

        done = 0
        chk_at = {GR[1][0]: 1, GR[2][0]: 2, GR[3][0]: 3}
        w2c = None
        for n, (u, s) in enumerate(seq):
            if n < 56 and u == 0 and s in chk_at:
                check(chk_at[s])
            if n == 56:
                assert len(bg) < 28, len(bg)
                a(f"s_mul_i32 s7, s{sT3}, {4096 - 8}")
                a(f"s_add_u32 s{sB}, s{sS}, 3072")
                a(f"s_sub_u32 s{sB}, s{sB}, s7")
                a(f"s_lshl_b32 s{sFL}, s{sJ}, 2")
                a(f"s_add_u32 s{sFL}, s{sFL}, s{sWV}")
                a(f"s_lshl_b32 s{sFL}, s{sFL}, 2")
                a(f"s_add_u32 s{sFL}, s{sFL}, s{sGB}")
                a(f"s_add_u32 s{sFL}, s{sFL}, {GB_FL}")
                bg += mix(epi([0, 1]) + epi([2, 3]), [w3_item(g, i == 0) for i, g in enumerate(w3g)], 8)
                self.stamp("ph2")
            if n == 84:
                bg += epi([4, 5]) + [("call", flag(0), 4)]
                if self.upto >= 5:
                    bg += self.s4_setup()
                self.stamp("ph3")
            a.wait(ftok[(u, s)])
            for tt in range(2):
                d = vr(ACC + 8 * u + 4 * tt, 4)
                c = d if (s or u >= 4) else "0"
                a(f"v_mfma_f32_16x16x32_bf16 {d}, {ar(ring(n), 4)}, {vr(hreg(tt, s), 4)}, {c}")
                if tt == 1:
                    done = n + 1
                rd_step(done)
                bgl(1 + tt if n < 56 else 2)
        while bg:
            bgl(8)
        self.stamp("mm3")
        bg += epi([6])
        while bg:
            bgl(8)
        self.stamp("h1st")
        if self.upto < 5:
            flag(1)()

    def s4_setup(self):
        vFL, vFD, vH, vHB, vB2, hi, r16, tk16 = self.s4v = 14, 15, 16, 17, 18, 19, 28, 29
        HB_, B2R = 96, 104
        sHa, sHb = sTOK, sWBASE
        o = [f"v_lshrrev_b32 v{hi}, 5, v0",
             f"v_bfe_u32 v{r16}, v0, 4, 1",
             f"v_and_b32 v{tk16}, 15, v0",
             f"v_bfe_u32 v{vB2}, v0, 1, 2",
             f"v_lshlrev_b32 v{vB2}, 4, v{vB2}",
             f"v_and_b32 v{vFL}, 1, v0",
             f"v_lshl_add_u32 v{vFL}, v{vFL}, 2, v{vB2}",
             f"s_lshl_b32 s{sC}, s{sWV}, 6",
             f"s_lshl_b32 s7, s{sTH}, 3",
             f"s_add_u32 s{sC}, s{sC}, s7",
             f"s_add_u32 s{sC}, s{sC}, s{sGB}",
             f"s_add_u32 s{sC}, s{sC}, {GB_FL}"]
        self.fl = [f"buffer_load_dword v{vFD}, v{vFL}, {srd(SWS)}, s{sC} offen sc1",
                   f"buffer_load_dword v{vFD}, v{vFL}, {srd(SWS)}, s{sC} offen offset:256 sc1"]
        o += [f"v_lshlrev_b32 v{tk16}, 4, v{tk16}",
              f"v_lshl_add_u32 v{tk16}, v{hi}, 8, v{tk16}",
              "s_movk_i32 s7, 14336",
              f"v_mad_u32_u24 v{vHB}, v{r16}, s7, v{tk16}",
              "s_mov_b32 s7, 57344",
              f"v_mad_u32_u24 v{vH}, v{r16}, s7, v{tk16}",
              f"s_and_b32 s{sD}, s{sWV}, 1",
              f"s_lshl_b32 s{sE}, s{sTH}, 1",
              f"s_add_u32 s{sE}, s{sE}, s{sD}",
              f"s_mul_i32 s{sXB}, s{sE}, {2 * 14336}",
              f"s_lshr_b32 s{sF}, s{sWV}, 1",
              f"s_lshl_b32 s7, s{sT1}, 1",
              f"s_add_u32 s{sF}, s{sF}, s7",
              f"s_lshl_b32 s7, s{sF}, 10",
              f"s_add_u32 s{sXB}, s{sXB}, s7",
              f"s_add_u32 s{sXB}, s{sXB}, s{sGB}",
              f"s_add_u32 s{sXB}, s{sXB}, {GB_HB}",
              f"v_lshlrev_b32 v{vB2}, 3, v{hi}",
              f"s_lshl_b32 s{sD}, s{sF}, 6"]
        self.hbl = [f"buffer_load_dwordx4 {vr(HB_, 4)}, v{vHB}, {srd(SWS)}, s{sXB} offen sc1",
                    f"buffer_load_dwordx4 {vr(HB_ + 4, 4)}, v{vHB}, {srd(SWS)}, s{sXB} offen offset:512 sc1"]
        o += self.hbl
        for q in range(4):
            off = f" offset:{16 * q}" if q else ""
            o.append(f"buffer_load_dwordx2 {vr(B2R + 2 * q, 2)}, v{vB2}, {srd(SB2)}, s{sD} offen{off}")
        o += [f"s_mul_i32 s{sHa}, s{sE}, {2 * 57344}",
              f"s_xor_b32 s7, s{sE}, 1",
              f"s_mul_i32 s{sHb}, s7, {2 * 57344}",
              f"s_mul_i32 s7, s{sWV}, 14336",
              f"s_add_u32 s7, s7, s{sGB}",
              f"s_add_u32 s7, s7, {GB_H1}",
              f"s_add_u32 s{sHa}, s{sHa}, s7",
              f"s_add_u32 s{sHb}, s{sHb}, s7"]

        def f():
            self.tkf = self.a(self.fl[0])
        o.append(("call", f, 2))
        return o

    def stage4(self):
        a = self.a
        t0, t1 = 30, 31
        vFL, vFD, vH, vHB, vB2, hi, r16, tk16 = self.s4v
        sHa, sHb = sTOK, sWBASE
        fl = self.fl
        X = [32, 48, 64, 80]
        HB_, B2R = 96, 104
        RG = 112
        NRG = 16
        a(f"s_cmp_ge_u32 s{sJ}, 14")
        a.branch_nf("s_cbranch_scc1 L_skip4")
        self.ool += ["L_skip4:", "    s_waitcnt vmcnt(0)", f"    v_mov_b32 v{t1}, 1", "    s_mov_b64 exec, 1",
                     f"    buffer_store_dword v{t1}, off, {srd(SWS)}, s{self.sFL} offset:256 sc1",
                     "    s_mov_b64 exec, -1", "    s_nop 7", "    s_branch L_fin"]

        def spin_flag(ld):
            Lr, Lb = a.newlabel("fl"), a.newlabel("flok")
            a(f"v_cmp_ne_u32 vcc, 1, v{vFD}")
            a.branch_nf(f"s_cbranch_vccnz {Lr}")
            a.label_nf(Lb)
            self.ool += [Lr + ":", "    s_nop 15", "    s_nop 7", f"    s_mov_b32 s{sCNT}, {SPIN}", Lr + "l:",
                         "    " + ld, "    s_waitcnt vmcnt(0)",
                         f"    v_cmp_ne_u32 vcc, 1, v{vFD}",
                         f"    s_sub_u32 s{sCNT}, s{sCNT}, 1", f"    s_cbranch_scc1 {Lr}x", "    s_nop 4",
                         f"    s_cbranch_vccnz {Lr}l", Lr + "x:", "    s_nop 7", f"    s_branch {Lb}"]

        def h_load(m):
            s, sub = KORD[m >> 1], m & 1
            o = s * 1024 + sub * 512
            r = RG + 8 * (m % NRG)
            out = []
            for i, sb in enumerate((sHa, sHb)):
                out.append([f"s_add_u32 s{sA}, s{sb}, {o}",
                            f"buffer_load_dwordx4 {vr(r + 4 * i, 4)}, v{vH}, {srd(SWS)}, s{sA} offen sc1"])
            return out

        a.wait(self.tkf)
        spin_flag(fl[0])
        self.stamp("fl0")
        ht = {}
        for m in range(4):
            ht[m] = self.emit(sum(h_load(m), []))
        self.flag(1)()
        hregs = [HB_, HB_ + 2, HB_ + 4, HB_ + 6]
        self.sent_check(hregs, t0)
        self.verify(t0, self.hbl, hregs)
        q = []
        for m in range(4, 8):
            q += [(m, g) for g in h_load(m)]
        for x in range(2):
            for hf in range(2):
                aa = 2 * hf + x
                for e in range(2):
                    hr = HB_ + 4 * x + 2 * hf + e
                    br = B2R + 2 * aa + e
                    d = X[0] + 4 * aa + 2 * e
                    a(f"v_lshlrev_b32 v{d}, 16, v{hr}")
                    a(f"v_and_b32 v{d + 1}, 0xffff0000, v{hr}")
                    a(f"v_lshlrev_b32 v{t0}, 16, v{br}")
                    a(f"v_and_b32 v{t1}, 0xffff0000, v{br}")
                    a(f"v_add_f32 v{d}, v{d}, v{t0}")
                    a(f"v_add_f32 v{d + 1}, v{d + 1}, v{t1}")
                    m, g = q.pop(0)
                    ht[m] = self.emit(g)
        a.wait(self.tk_w2)
        c3 = self.w2_consume(3)
        nxt = 8
        for m in range(28):
            if m == 10:
                a.wait(tkf)
                spin_flag(fl[1])
                self.stamp("fl1")
            if m == 20:
                a("s_barrier")
            a.wait(ht[m])
            if m == 0:
                self.stamp("h1arr")
            if m == 21:
                a.wait_lg()
            r = RG + 8 * (m % NRG)
            q = []
            lim = 15 if m < 10 else 27
            for _ in range(2 if 10 <= m < 13 else 1):
                if nxt <= lim and nxt - NRG < m:
                    q += [(nxt, g) for g in h_load(nxt)]
                    nxt += 1
            for c in range(2):
                for i in range(2):
                    xi = X[2 * c + i]
                    cin = vr(xi, 16) if (m or xi == X[0]) else "0"
                    a(f"v_mfma_f32_32x32x16_bf16 {vr(xi, 16)}, {ar(8 * m + 4 * c, 4)}, {vr(r + 4 * i, 4)}, {cin}")
                    if q:
                        mm, g = q.pop(0)
                        ht[mm] = self.emit(g)
                    if m >= 4 and c3:
                        self.emit(c3[:1])
                        c3 = c3[1:]
            if m == 5:
                tkf = a(fl[1])
        assert nxt == 28
        self.stamp("mm4")
        for i in range(1, 4):
            xi = X[(i >> 1) * 2 + (i & 1)]
            a(f"s_xor_b32 s7, s{sWV}, {i}")
            a(f"s_mul_i32 s7, s7, 12288")
            a(f"s_add_u32 s7, s7, {R1 + (i - 1) * 4096}")
            a(f"v_add_u32 v{t0 + (i & 1)}, s7, v{vL16}")
            for q in range(4):
                a(f"ds_write_b128 v{t0 + (i & 1)}, {vr(xi + 4 * q, 4)} offset:{1024 * q}")
        a(f"s_mul_i32 s7, s{sWV}, 12288")
        a(f"s_add_u32 s7, s7, {R1}")
        a(f"v_add_u32 v{vFL}, s7, v{vL16}")
        a(f"v_and_b32 v{vHB}, 31, v0")
        a(f"v_mul_u32_u24 v{vHB}, 896, v{vHB}")
        a(f"v_lshl_add_u32 v{vHB}, v{hi}, 4, v{vHB}")
        a(f"s_lshl_b32 s7, s{sG}, 2")
        a(f"s_add_u32 s7, s7, s{sE}")
        a(f"s_mul_i32 s{sA}, s7, {32 * 896}")
        a(f"s_lshl_b32 s7, s{sF}, 6")
        a(f"s_add_u32 s{sA}, s{sA}, s7")
        a.wait_lg()
        a("s_barrier")
        self.stamp("bred")
        tr = []
        for i in range(3):
            for q in range(4):
                tr.append(a(f"ds_read_b128 {vr(X[1 + i] + 4 * q, 4)}, v{vFL} offset:{4096 * i + 1024 * q}"))
        for i in range(3):
            for q in range(4):
                a.wait(tr[4 * i + q])
                for e in range(4):
                    d = X[0] + 4 * q + e
                    a(f"v_add_f32 v{d}, v{d}, v{X[1 + i] + 4 * q + e}")
        PK = 96
        for i in range(8):
            a(f"v_cvt_pk_bf16_f32 v{PK + i}, v{X[0] + 2 * i}, v{X[0] + 2 * i + 1}")
        for p in range(2):
            a(f"v_permlane32_swap_b32 v{PK + 4 * p}, v{PK + 4 * p + 2}")
            a(f"v_permlane32_swap_b32 v{PK + 4 * p + 1}, v{PK + 4 * p + 3}")
        for p in range(2):
            off = f" offset:{32 * p}" if p else ""
            a(f"buffer_store_dwordx4 {vr(PK + 4 * p, 4)}, v{vHB}, {srd(SOUT)}, s{sA} offen{off}")
        a.label("L_fin")

    def epilogue(self):
        a = self.a
        if self.stamps:
            self.stamp("end")
            a.wait_lg()
            a("s_lshl_b32 s7, s2, 2")
            a(f"s_add_u32 s7, s7, s{sWV}")
            a("s_lshl_b32 s7, s7, 7")
            a(f"s_add_u32 s7, s7, {WS_STAMP}")
            a("v_mov_b32 v2, 0")
            a("s_mov_b64 exec, 1")
            for i in range(self.nstamp):
                a(f"v_mov_b32 v4, s{sSTAMP + 2 * i}")
                a(f"buffer_store_dword v4, v2, {srd(SWS)}, s7 offen offset:{4 * i}")
        a.label("L_end")
        a("s_endpgm")
        for t in self.ool:
            a.raw(t)

    def build(self):
        self.prologue()
        self.stage1()
        if self.upto >= 3:
            self.stage2()
        if self.upto >= 4:
            self.stage3()
        if self.upto >= 5:
            self.stage4()
        self.epilogue()
        return kernel_text(self.a.finalize(), LDS_BYTES)


if __name__ == "__main__":
    out = sys.argv[1]
    opt = {}
    for kv in sys.argv[4:]:
        k, v = kv.split("=")
        opt[k] = v if k == 'tp' else int(v)
    st = sys.argv[3] if len(sys.argv) > 3 and sys.argv[3] != "-" else False
    g = Gen(upto=int(sys.argv[2]) if len(sys.argv) > 2 else 99, stamps=st, **opt)
    open(out, "w").write(g.build())
    print("nops inserted:", g.a.total_nops, "stamps:", g.stamp_log)
```
